```python
import torch

def _softmax(x, axis=-1):
    return torch.softmax(x, dim=axis)
def _gelu(x):
    return torch.nn.functional.gelu(x, approximate="tanh")
def _silu(x):
    return torch.nn.functional.silu(x)
def _sigmoid(x):
    return torch.sigmoid(x)
def _layernorm(x, axis=-1, eps=1e-5):
    m = x.mean(dim=axis, keepdim=True)
    v = x.var(dim=axis, keepdim=True, unbiased=False)
    return (x - m) / torch.sqrt(v + eps)
def _scatter_add(tgt, idx, src, axis=0):
    return tgt.clone().index_add_(axis, idx, src)
def _segment_sum(src, seg, n):
    out = torch.zeros((n,) + src.shape[1:], dtype=src.dtype)
    return out.index_add_(0, seg, src)
def _pad(x, pw):
    flat = tuple(v for pair in reversed(pw) for v in pair)
    return torch.nn.functional.pad(x, flat)

kernel_name = 'standalone__kernel_systems_refs_featgraph__graph'

def setup_inputs():

    _w = (lambda a: (lambda t: t.to(torch.bfloat16) if t.is_floating_point() else t)(torch.as_tensor(a)))
    N, deg, D = 12500, 32, 128
    E = N * deg
    scale = D ** -0.5
    src = (lambda lo, hi, *s: torch.randint(lo, hi, s))(0, N, E).to(torch.int64)
    dst = (lambda lo, hi, *s: torch.randint(lo, hi, s))(0, N, E).to(torch.int64)
    return {
        "x": _w((lambda *s: torch.randn(*s, dtype=torch.bfloat16) * 0.8)(N, D)),
        "src": _w(src),
        "dst": _w(dst),
        "w_q": _w((lambda *s: torch.randn(*s, dtype=torch.bfloat16) * 0.8)(D, D) * scale),
        "w_v": _w((lambda *s: torch.randn(*s, dtype=torch.bfloat16) * 0.05)(D, D) * scale),
    }

def reference(x, src, dst, w_q, w_v):
    N, D = x.shape
    xs = x[src]
    xd = x[dst]
    q = xd @ w_q
    logits = torch.einsum('ed,ed->e', xs, q) * (float(D) ** -0.5)
    alpha = _sigmoid(logits)
    msg = alpha[:, None] * (xs @ w_v)
    return _segment_sum(msg, dst, N)
```

```python
import sys

N = 12500; E = 400000
NPB = 49; NB = 256
CH = 3200; NCH = 125
CAP = 31
MARK = 0xFFFFFFFE
WS_CELLS = 0
WS_Q = 0x400000
WS_WVF = 0x800000
WS_OVF = 0x900000
WS_OVFCNT = 0xB00000
WS_TS = 0x1000000
CELLROW = NCH * 128

opt = dict(ts=0, pf=0)
for a in sys.argv[1:]:
    k, v = a.split("=")
    opt[k] = int(v, 0)

L = []
def A(s):
    for line in s.split("\n"):
        L.append(line)

def kd(name, vg, sg):
    A(f"""
.section .rodata,"a"
.p2align 6
.amdhsa_kernel {name}
  .amdhsa_next_free_vgpr {vg}
  .amdhsa_next_free_sgpr {sg}
  .amdhsa_accum_offset {(vg+3)//4*4}
  .amdhsa_group_segment_fixed_size 0
  .amdhsa_kernarg_size 64
  .amdhsa_user_sgpr_count 2
  .amdhsa_user_sgpr_kernarg_segment_ptr 1
  .amdhsa_system_sgpr_workgroup_id_x 1
.end_amdhsa_kernel
.text""")

def srd(d, lo, hi, nbytes, off=0):
    if off:
        A(f"  s_add_u32 s{d}, s{lo}, {off:#x}")
        A(f"  s_addc_u32 s{d+1}, s{hi}, 0")
    else:
        A(f"  s_mov_b32 s{d}, s{lo}")
        A(f"  s_mov_b32 s{d+1}, s{hi}")
    A(f"  s_mov_b32 s{d+2}, {nbytes}")
    A(f"  s_mov_b32 s{d+3}, 0x20000")

LDS_A = 83968
NS = 784
L_NODE = 0
L_CNT = 50 * NS
L_FLAGS = L_CNT + 256
L_LIST = L_FLAGS + 32
NQMAX = 1088
L_QN = L_LIST + NQMAX * 16
L_WVF = 61440
LDS_B = L_WVF + 32768
DUMMY = 49 * NS
PAD = 0x7FFFFF00

hdr = open("standalone__kernel_systems_refs_featgraph__graph.s.ref").read().split("\n")
for line in hdr:
    if line.startswith("; Override") : break
    A(line)
A(f"; @launch kernel=fg_part_kernel grid=(254,1,1) block=(1024,1,1) lds={LDS_A}")
A(f"; @launch kernel=fg_main_kernel grid=(256,1,1) block=(1024,1,1) lds={LDS_B}")
A('.amdgcn_target "amdgcn-amd-amdhsa--gfx950"')
A(".text")

def ts_stamp(sreg):
    if opt["ts"]:
        A(f"  s_memrealtime s[{sreg}:{sreg+1}]")

def ts_store(regs, slot0, wsl, wsh, label):
    if not opt["ts"]:
        return
    A("  s_waitcnt lgkmcnt(0)")
    A(f"  s_add_u32 s90, s{wsl}, {WS_TS:#x}")
    A(f"  s_addc_u32 s91, s{wsh}, 0")
    A(f"  s_lshl_b32 s92, s2, 7")
    A(f"  v_mov_b32 v1, s92")
    A(f"  s_mov_b64 exec, 1")
    A(f"  v_readfirstlane_b32 s93, v0")
    A(f"  s_cmp_lg_u32 s93, 0")
    A(f"  s_cbranch_scc1 {label}")
    for i, r in enumerate(regs):
        A(f"  v_mov_b32 v2, s{r}")
        A(f"  v_mov_b32 v3, s{r+1}")
        A(f"  global_store_dwordx2 v1, v[2:3], s[90:91] offset:{(slot0+i)*8}")
        A(f"  s_nop 1")
    A(f"{label}:")

A("""
.globl fg_part_kernel
.p2align 8
.type fg_part_kernel,@function
fg_part_kernel:""")
ts_stamp(80)
A("""  s_cmp_ge_u32 s2, 254
  s_cbranch_scc1 A_done
  s_load_dwordx8 s[4:11], s[0:1], 0        ; x, src, dst, wq
  s_load_dwordx2 s[12:13], s[0:1], 32      ; wv
  s_load_dwordx2 s[14:15], s[0:1], 56      ; ws
  v_lshlrev_b32 v1, 4, v0                  ; tid*16
  s_cmp_ge_u32 s2, 125
  s_cbranch_scc1 A_qrole
  ; ---------------- partition role: chunk = s2
  s_mul_i32 s3, s2, 12800
  v_add_u32 v2, s3, v1                     ; byte offset of this thread's 4 edges
  v_mov_b32 v4, -1
  v_mov_b32 v5, -1
  v_mov_b32 v6, -1
  v_mov_b32 v7, -1
  v_mov_b32 v8, 0
  v_mov_b32 v9, 0
  v_mov_b32 v10, 0
  v_mov_b32 v11, 0
  v_cmp_gt_u32 s[20:21], 800, v0 /*PATCH800*/
  s_waitcnt lgkmcnt(0)""".replace("v_cmp_gt_u32 s[20:21], 800, v0 /*PATCH800*/", "v_mov_b32 v3, 800\n  v_cmp_gt_u32 s[20:21], v3, v0"))
srd(24, 8, 9, 1600000)
srd(28, 6, 7, 1600000)
srd(32, 14, 15, NB * CELLROW, WS_CELLS)
srd(36, 14, 15, NCH * CH * 4 + 0x200000 + NCH * 4, WS_OVF)
A(f"""  s_mov_b64 exec, s[20:21]
  s_cbranch_execz A_p_noload
  buffer_load_dwordx4 v[12:15], v2, s[24:27], 0 offen
  buffer_load_dwordx4 v[16:19], v2, s[28:31], 0 offen
A_p_noload:
  s_mov_b64 exec, -1
  ds_write_b128 v1, v[4:7]
  ds_write_b128 v1, v[4:7] offset:16384
  v_cmp_gt_u32 vcc, 65, v0
  s_mov_b64 exec, vcc
  ds_write_b128 v1, v[8:11] offset:32768
  s_mov_b64 exec, -1
  s_waitcnt lgkmcnt(0)
  s_barrier
  s_mov_b64 exec, s[20:21]
  s_cbranch_execz A_p_placed
  s_mov_b32 s16, 21400
  v_mov_b32 v3, 1
  s_waitcnt vmcnt(1)""")
for i in range(4):
    A(f"  v_mul_u32_u24 v{20+i}, s16, v{12+i}")
for i in range(4):
    A(f"  v_lshrrev_b32 v{20+i}, 20, v{20+i}       ; bucket")
for i in range(4):
    A(f"  v_lshlrev_b32 v{24+i}, 2, v{20+i}")
for i in range(4):
    A(f"  ds_add_rtn_u32 v{28+i}, v{24+i}, v3 offset:32768")
for i in range(4):
    A(f"  v_mul_u32_u24 v{24+i}, 49, v{20+i}")
for i in range(4):
    A(f"  v_sub_u32 v{24+i}, v{12+i}, v{24+i}")
A("  s_waitcnt vmcnt(0)")
for i in range(4):
    A(f"  v_lshl_or_b32 v{24+i}, v{16+i}, 8, v{24+i}  ; entry")
A(f"  v_mov_b32 v36, {MARK:#x}")
A("  s_waitcnt lgkmcnt(0)")
for i in range(4):
    A(f"  v_cmp_le_u32 s[{40+2*i}:{41+2*i}], {CAP}, v{28+i}")
for i in range(4):
    A(f"  v_min_u32 v{32+i}, {CAP}, v{28+i}")
for i in range(4):
    A(f"  v_add_u32 v{32+i}, v{32+i}, v{20+i}")
for i in range(4):
    A(f"  v_and_b32 v{32+i}, 31, v{32+i}")
for i in range(4):
    A(f"  v_lshlrev_b32 v{32+i}, 2, v{32+i}")
for i in range(4):
    A(f"  v_lshl_add_u32 v{32+i}, v{20+i}, 7, v{32+i}")
for i in range(4):
    A(f"  v_cndmask_b32 v{24+i}, v{24+i}, v36, s[{40+2*i}:{41+2*i}]")
for i in range(4):
    A(f"  ds_write_b32 v{32+i}, v{24+i}")
A("""  s_or_b64 s[48:49], s[40:41], s[42:43]
  s_or_b64 s[50:51], s[44:45], s[46:47]
  s_or_b64 s[48:49], s[48:49], s[50:51]
  s_cbranch_scc0 A_p_placed
  v_mov_b32 v37, 33792
  s_mul_i32 s17, s2, 12800""")
for i in range(4):
    A(f"""  s_mov_b64 exec, s[{40+2*i}:{41+2*i}]
  s_cbranch_execz A_p_ov{i}
  ds_add_rtn_u32 v38, v37, v3
  v_lshl_or_b32 v39, v{16+i}, 14, v{12+i}
  s_waitcnt lgkmcnt(0)
  v_lshlrev_b32 v38, 2, v38
  buffer_store_dword v39, v38, s[36:39], s17 offen
A_p_ov{i}:""")
A(f"""A_p_placed:
  s_mov_b64 exec, -1
  s_waitcnt lgkmcnt(0)
  s_barrier
  ds_read_b128 v[4:7], v1
  ds_read_b128 v[8:11], v1 offset:16384
  v_mov_b32 v37, 33792
  ds_read_b32 v38, v37
  v_lshrrev_b32 v2, 3, v0
  v_mul_u32_u24 v2, {CELLROW}, v2
  v_and_b32 v3, 7, v0
  v_lshl_add_u32 v2, v3, 4, v2
  s_lshl_b32 s3, s2, 7
  s_add_u32 s16, s3, {128 * CELLROW}
  s_lshl_b32 s17, s2, 2
  s_add_u32 s17, s17, 0x200000
  v_mov_b32 v3, 0
  s_waitcnt lgkmcnt(2)
  buffer_store_dwordx4 v[4:7], v2, s[32:35], s3 offen
  s_waitcnt lgkmcnt(1)
  buffer_store_dwordx4 v[8:11], v2, s[32:35], s16 offen
  v_cmp_eq_u32 vcc, 0, v0
  s_mov_b64 exec, vcc
  s_cbranch_execz A_p_end
  s_waitcnt lgkmcnt(0)
  buffer_store_dword v38, v3, s[36:39], s17 offen
A_p_end:""")
if opt["ts"]:
    A("  s_waitcnt vmcnt(0)")
    ts_stamp(82)
    ts_store([80, 82], 0, 14, 15, "A_p_ts")
A("  s_endpgm")

XL = 40960
A(f"""A_qrole:
  v_lshrrev_b32 v2, 4, v0
  v_and_b32 v3, 15, v0
  v_lshlrev_b32 v3, 4, v3                  ; chunk*16
  v_mul_u32_u24 v4, 320, v2
  v_add_u32 v4, v4, v3
  v_mul_u32_u24 v5, 272, v2
  v_add_u32 v5, v5, v3
  v_and_b32 v6, 63, v0                     ; lane
  v_lshrrev_b32 v7, 6, v0                  ; wave
  v_lshrrev_b32 v8, 4, v6                  ; g
  v_bfe_u32 v9, v6, 2, 2                   ; r
  v_and_b32 v10, 3, v6                     ; c
  v_readfirstlane_b32 s18, v7
  s_waitcnt lgkmcnt(0)
  s_cmp_eq_u32 s2, 253
  s_cbranch_scc1 A_wvrole""")
srd(24, 10, 11, 32768)
srd(28, 4, 5, N * 256)
srd(32, 14, 15, NB * 16384, WS_Q)
A(f"""  s_sub_u32 s3, s2, 125
  s_mul_i32 s16, s3, {98*256}
  s_add_u32 s17, s16, 16384
  buffer_load_dwordx4 v[12:15], v1, s[24:27], 0 offen
  buffer_load_dwordx4 v[20:23], v1, s[28:31], s16 offen
  s_movk_i32 s19, 0x4000
  buffer_load_dwordx4 v[16:19], v1, s[24:27], s19 offen
  buffer_load_dwordx4 v[24:27], v1, s[28:31], s17 offen
  v_lshl_add_u32 v11, v8, 3, v9
  v_mul_u32_u24 v11, 320, v11
  v_lshl_add_u32 v11, v10, 4, v11
  s_and_b32 s20, s18, 3
  s_lshl_b32 s21, s20, 6
  v_add_u32 v11, s21, v11
  s_lshr_b32 s22, s18, 3
  s_mul_i32 s23, s22, 49
  s_bfe_u32 s40, s18, 0x10002
  s_lshl_b32 s41, s40, 5
  s_add_u32 s23, s23, s41
  v_and_b32 v28, 15, v6
  v_add_u32 v28, s23, v28
  v_mul_u32_u24 v28, 272, v28
  v_lshl_add_u32 v28, v8, 4, v28
  v_add_u32 v28, {XL}, v28
  v_add_u32 v5, {XL}, v5
  s_waitcnt vmcnt(3)
  ds_write_b128 v4, v[12:15]
  s_waitcnt vmcnt(2)
  ds_write_b128 v5, v[20:23]
  s_waitcnt vmcnt(1)
  ds_write_b128 v4, v[16:19] offset:{64*320}
  s_waitcnt vmcnt(0)
  ds_write_b128 v5, v[24:27] offset:{64*272}
  s_waitcnt lgkmcnt(0)
  s_barrier""")
for s in range(4):
    for b in range(2):
        r = 32 + (b*4+s)*4
        A(f"  ds_read_b64_tr_b16 v[{r}:{r+1}], v11 offset:{s*10240 + 8*b}")
        A(f"  ds_read_b64_tr_b16 v[{r+2}:{r+3}], v11 offset:{s*10240 + 1280 + 8*b}")
    for ti in range(2):
        r = 64 + (ti*4+s)*4
        A(f"  ds_read_b128 v[{r}:{r+3}], v28 offset:{ti*16*272 + s*64}")
    if s >= 1:
        pass
for s in range(4):
    rem = (3 - s) * 6
    A(f"  s_waitcnt lgkmcnt({min(rem,15)})")
    for ti in range(2):
        for b in range(2):
            d = 96 + (ti*2+b)*4
            a = 32 + (b*4+s)*4
            bb = 64 + (ti*4+s)*4
            c = "0" if s == 0 else f"v[{d}:{d+3}]"
            A(f"  v_mfma_f32_16x16x32_bf16 v[{d}:{d+3}], v[{a}:{a+3}], v[{bb}:{bb+3}], {c}")
A(f"""  ; store offset: bucket*16384 + (tau&3)*4096 + T'*1024 + lane*16
  s_lshl_b32 s3, s3, 1
  s_add_u32 s3, s3, s22                    ; bucket
  s_lshl_b32 s3, s3, 14
  s_lshl_b32 s40, s40, 13
  s_add_u32 s3, s3, s40
  s_lshl_b32 s20, s20, 10
  s_add_u32 s3, s3, s20
  s_add_u32 s16, s3, 4096
  v_lshlrev_b32 v6, 4, v6
  s_nop 7""")
for ti in range(2):
    d = 96 + ti*8
    for k in range(4):
        A(f"  v_cvt_pk_bf16_f32 v{12+ti*4+k}, v{d+2*k}, v{d+2*k+1}")
A("""  buffer_store_dwordx4 v[12:15], v6, s[32:35], s3 offen
  buffer_store_dwordx4 v[16:19], v6, s[32:35], s16 offen""")
if opt["ts"]:
    A("  s_waitcnt vmcnt(0)")
    ts_stamp(82)
    ts_store([80, 82], 0, 14, 15, "A_q_ts")
A("  s_endpgm")
A("A_wvrole:")
srd(24, 12, 13, 32768)
srd(32, 14, 15, 32768, WS_WVF)
A(f"""  buffer_load_dwordx4 v[12:15], v1, s[24:27], 0 offen
  s_movk_i32 s19, 0x4000
  buffer_load_dwordx4 v[16:19], v1, s[24:27], s19 offen
  ; col = 32*(T>>1) + 8c + 4*(T&1)
  v_and_b32 v11, 1, v8
  v_lshlrev_b32 v11, 5, v11
  v_lshrrev_b32 v28, 1, v8
  v_add_u32 v11, v11, v28
  v_lshl_add_u32 v11, v9, 2, v11
  s_and_b32 s20, s18, 1
  s_lshl_b32 s20, s20, 6
  v_add_u32 v11, s20, v11
  v_mul_u32_u24 v11, 320, v11
  v_lshl_add_u32 v11, v10, 4, v11
  s_lshr_b32 s21, s18, 2
  s_lshl_b32 s21, s21, 6
  s_bfe_u32 s22, s18, 0x10001
  s_lshl_b32 s22, s22, 3
  s_add_u32 s21, s21, s22
  v_add_u32 v11, s21, v11
  v_lshlrev_b32 v6, 4, v6
  s_lshl_b32 s3, s18, 11                   ; (T*4 + 2*(w&1))*1024 = w*2048
  s_waitcnt vmcnt(1)
  ds_write_b128 v4, v[12:15]
  s_waitcnt vmcnt(0)
  ds_write_b128 v4, v[16:19] offset:{64*320}
  s_waitcnt lgkmcnt(0)
  s_barrier
  ds_read_b64_tr_b16 v[12:13], v11
  ds_read_b64_tr_b16 v[14:15], v11 offset:{16*320}
  ds_read_b64_tr_b16 v[16:17], v11 offset:{2*320}
  ds_read_b64_tr_b16 v[18:19], v11 offset:{18*320}
  s_waitcnt lgkmcnt(2)
  buffer_store_dwordx4 v[12:15], v6, s[32:35], s3 offen
  s_waitcnt lgkmcnt(0)
  buffer_store_dwordx4 v[16:19], v6, s[32:35], s3 offen offset:1024
A_done:
  s_endpgm""")
kd("fg_part_kernel", 112, 96)

vLX = 1
vLQ = 2
vAC = 3
vM = 4
vLB = 8; vQB = 9; vPREV = 10
vI = [12, 14]
vQO = [16, 18]
vT = 20
vAa = 28; vAb = 32
vD = 36
vQ = 44
vX = [60, 76]
vE = 92
vR = 96
vP = 100
NVB = 112

A("""
.globl fg_main_kernel
.p2align 8
.type fg_main_kernel,@function
fg_main_kernel:""")
ts_stamp(80)
A(f"""  s_cmp_ge_u32 s2, 256
  s_cbranch_scc1 B_done
  s_load_dwordx2 s[4:5], s[0:1], 0
  s_load_dwordx2 s[6:7], s[0:1], 40
  s_load_dwordx2 s[8:9], s[0:1], 56
  v_lshlrev_b32 v{vP}, 4, v0               ; tid*16
  v_and_b32 v{vP+1}, 63, v0                ; lane
  v_lshrrev_b32 v{vP+2}, 6, v0             ; wave
  v_mov_b32 v{vE}, -1
  v_mov_b32 v{vE+1}, -1
  v_readfirstlane_b32 s36, v{vP+2}
  v_mov_b32 v{vE+2}, -1
  v_mov_b32 v{vE+3}, -1
  v_mov_b32 v{vT}, 1000
  v_cmp_gt_u32 s[40:41], v{vT}, v0
  s_mul_i32 s3, s2, {CELLROW}
  s_lshl_b32 s10, s2, 14
  s_lshl_b32 s11, s36, 11
  s_add_u32 s37, s11, {L_WVF}
  s_mov_b32 m0, s37
  v_lshlrev_b32 v{vP+3}, 4, v{vP+1}        ; lane*16
  s_waitcnt lgkmcnt(0)""")
srd(16, 8, 9, NB * CELLROW, WS_CELLS)
srd(20, 8, 9, NB * 16384, WS_Q)
srd(24, 8, 9, 32768, WS_WVF)
A(f"""  s_mov_b64 exec, s[40:41]
  buffer_load_dwordx4 v[{vE}:{vE+3}], v{vP}, s[16:19], s3 offen
  s_mov_b64 exec, -1
  buffer_load_dwordx4 v[{vX[0]}:{vX[0]+3}], v{vP}, s[20:23], s10 offen
  buffer_load_dwordx4 v{vP+3}, s[24:27], s11 offen lds
  buffer_load_dwordx4 v{vP+3}, s[24:27], s11 offen offset:1024 lds""")
srd(12, 4, 5, N * 256)
srd(28, 6, 7, N * 256)
srd(32, 8, 9, NCH * CH * 4, WS_OVF)
z = vX[1]
A(f"""  v_mov_b32 v{z}, 0
  v_mov_b32 v{z+1}, 0
  v_mov_b32 v{z+2}, 0
  v_mov_b32 v{z+3}, 0
  v_lshrrev_b32 v{vT}, 5, v0               ; row
  v_mul_u32_u24 v{vT}, {NS}, v{vT}
  v_and_b32 v{vT+1}, 31, v0
  v_lshl_add_u32 v{vT}, v{vT+1}, 4, v{vT}
  ds_write_b128 v{vT}, v[{z}:{z+3}]
  v_mov_b32 v{vT+1}, {18*32}
  v_cmp_gt_u32 vcc, v{vT+1}, v0
  s_mov_b64 exec, vcc
  ds_write_b128 v{vT}, v[{z}:{z+3}] offset:{32*NS}
  v_cmp_gt_u32 vcc, 35, v0
  s_mov_b64 exec, vcc
  ds_write_b128 v{vP}, v[{z}:{z+3}] offset:{DUMMY+512}
  s_mov_b64 exec, -1
  s_mov_b32 s54, {MARK:#x}
  s_mov_b32 s55, 0xbe0293ee                ; -log2(e)/sqrt(128)
  s_mov_b32 s48, 0x00ff00ff
  s_mov_b32 s49, 0xff00ff00
B_round_init:
  v_mov_b32 v{z+4}, {PAD:#x}
  v_mov_b32 v{z+5}, {PAD:#x}
  v_mov_b32 v{z+6}, {PAD:#x}
  v_mov_b32 v{z+7}, {PAD:#x}
  v_mov_b32 v{z+8}, {DUMMY}
  v_mov_b32 v{z+9}, {DUMMY}
  v_mov_b32 v{z+10}, {DUMMY}
  v_mov_b32 v{z+11}, {DUMMY}
  ds_write_b128 v{vP}, v[{z+4}:{z+7}] offset:{L_LIST}
  v_cmp_gt_u32 vcc, {NQMAX-1024}, v0
  s_mov_b64 exec, vcc
  ds_write_b128 v{vP}, v[{z+4}:{z+7}] offset:{L_LIST+16384}
  s_mov_b64 exec, -1
  v_mov_b32 v{vT+1}, {NQMAX//4}
  v_cmp_gt_u32 vcc, v{vT+1}, v0
  s_mov_b64 exec, vcc
  ds_write_b128 v{vP}, v[{z+8}:{z+11}] offset:{L_QN}
  s_mov_b64 exec, -1""")
A(f"""  v_and_b32 v{vLX}, 7, v0
  v_lshrrev_b32 v{vT}, 1, v{vLX}           ; t>>1
  v_and_b32 v{vT+1}, 1, v0
  v_mov_b32 v{vT+2}, 0xffff
  v_lshlrev_b32 v{vT+1}, 4, v{vT+1}
  v_lshlrev_b32 v{vT+2}, v{vT+1}, v{vT+2}""")
for d in range(4):
    A(f"  v_cmp_eq_u32 vcc, {d}, v{vT}")
    A(f"  s_nop 1")
    A(f"  v_cndmask_b32 v{vM+d}, 0, v{vT+2}, vcc")
A(f"""  v_bfe_u32 v{vT}, v0, 4, 1                ; g&1
  v_lshl_add_u32 v{vAC}, v{vLX}, 1, v{vT}  ; kappa
  v_lshlrev_b32 v{vAC}, 2, v{vAC}
  v_lshlrev_b32 v{vLX}, 4, v{vLX}
  v_add_u32 v{vLQ}, 512, v{vLX}
  v_mov_b32 v{vT+3}, 1
  s_waitcnt lgkmcnt(0)
  s_barrier""")
ts_stamp(82)
A(f"""  s_waitcnt vmcnt(3)""")
ts_stamp(84)
for i in range(4):
    A(f"  v_cmp_gt_u32 s[{40+2*i}:{41+2*i}], s54, v{vE+i}")
for i in range(4):
    A(f"  v_and_b32 v{vP+4+i}, 0xff, v{vE+i}")
for i in range(4):
    A(f"  v_lshlrev_b32 v{vP+4+i}, 2, v{vP+4+i}   ; loc*4")
for i in range(4):
    A(f"  s_mov_b64 exec, s[{40+2*i}:{41+2*i}]")
    A(f"  ds_add_rtn_u32 v{vR+i}, v{vP+4+i}, v{vT+3} offset:{L_CNT}")
A(f"  s_mov_b64 exec, -1")
A(f"""  v_cmp_eq_u32 vcc, s54, v{vE}
  v_cmp_eq_u32 s[56:57], s54, v{vE+1}
  v_cmp_eq_u32 s[58:59], s54, v{vE+2}
  v_cmp_eq_u32 s[60:61], s54, v{vE+3}
  s_or_b64 vcc, vcc, s[56:57]
  s_or_b64 s[58:59], s[58:59], s[60:61]
  s_or_b64 vcc, vcc, s[58:59]
  s_cbranch_scc0 B_nomark
  s_mov_b64 exec, vcc
  v_lshrrev_b32 v{vT}, 3, v0               ; chunk
  v_lshlrev_b32 v{vT+1}, v{vT}, v{vT+3}    ; 1 << (chunk&31)
  v_lshrrev_b32 v{vT}, 5, v{vT}
  v_lshlrev_b32 v{vT}, 2, v{vT}
  ds_or_b32 v{vT}, v{vT+1} offset:{L_FLAGS}
  s_mov_b64 exec, -1
B_nomark:""")
A(f"""  s_cmp_eq_u32 s62, 0x5a5a5a5a
  s_cbranch_scc1 B_noq""") if False else None
A(f"""  s_cbranch_execz B_done_never""") if False else None
A(f"""  s_waitcnt lgkmcnt(0)
  s_barrier""")
A(f"""  v_lshlrev_b32 v{vT}, 2, v{vP+1}
  ds_read_b32 v{vT+1}, v{vT} offset:{L_CNT}
  v_mov_b32 v{vT+4}, {L_FLAGS}
  ds_read_b128 v[{vT+4}:{vT+7}], v{vT+4}
  s_waitcnt lgkmcnt(1)
  v_add_u32 v{vT+1}, 3, v{vT+1}
  v_lshrrev_b32 v{vT+1}, 2, v{vT+1}        ; nq
  v_mov_b32 v{vT+2}, v{vT+1}
  s_nop 1
  v_add_u32_dpp v{vT+2}, v{vT+2}, v{vT+2} row_shr:1 row_mask:0xf bank_mask:0xf
  s_nop 1
  v_add_u32_dpp v{vT+2}, v{vT+2}, v{vT+2} row_shr:2 row_mask:0xf bank_mask:0xf
  s_nop 1
  v_add_u32_dpp v{vT+2}, v{vT+2}, v{vT+2} row_shr:4 row_mask:0xf bank_mask:0xf
  s_nop 1
  v_add_u32_dpp v{vT+2}, v{vT+2}, v{vT+2} row_shr:8 row_mask:0xf bank_mask:0xf
  s_nop 1
  v_add_u32_dpp v{vT+2}, v{vT+2}, v{vT+2} row_bcast:15 row_mask:0xa bank_mask:0xf
  s_nop 1
  v_add_u32_dpp v{vT+2}, v{vT+2}, v{vT+2} row_bcast:31 row_mask:0xc bank_mask:0xf
  s_nop 0
  v_sub_u32 v{vT+1}, v{vT+2}, v{vT+1}      ; qstart
  v_readlane_b32 s37, v{vT+2}, 63          ; T4
  v_lshlrev_b32 v{vT+1}, 2, v{vT+1}""")
for i in range(4):
    A(f"  ds_bpermute_b32 v{vP+8+i}, v{vP+4+i}, v{vT+1}")
A(f"""  s_add_u32 s37, s37, 31
  s_lshr_b32 s37, s37, 5                   ; P
  v_mov_b32 v{vT+3}, {NS//4}""")
for i in range(4):
    A(f"  v_mul_u32_u24 v{vP+4+i}, v{vP+4+i}, v{vT+3}   ; loc*NS")
for i in range(4):
    A(f"  v_and_b32 v{vE+i}, 0xffffff00, v{vE+i}")
A("  s_waitcnt lgkmcnt(0)")
for i in range(4):
    A(f"  v_add_u32 v{vR+i}, v{vR+i}, v{vP+8+i}")
for i in range(4):
    A(f"  v_lshlrev_b32 v{vP+8+i}, 2, v{vR+i}")
for i in range(4):
    A(f"  v_and_b32 v{vR+i}, -4, v{vR+i}")
for i in range(4):
    A(f"  s_mov_b64 exec, s[{40+2*i}:{41+2*i}]")
    A(f"  ds_write_b32 v{vP+8+i}, v{vE+i} offset:{L_LIST}")
    A(f"  ds_write_b32 v{vR+i}, v{vP+4+i} offset:{L_QN}")
A("  s_mov_b64 exec, -1")
A(f"""  s_cmp_lg_u32 s63, 0x600dbeef
  s_cbranch_scc0 B_q_staged""") if False else None
L.append("@@QSTAGE@@")
A(f"""  v_bfe_u32 v{vT}, v0, 3, 1
  s_lshl_b32 s38, s36, 1
  v_add_u32 v{vT}, s38, v{vT}
  v_mul_u32_u24 v{vT}, s37, v{vT}          ; stream*P
  v_lshlrev_b32 v{vQB}, 2, v{vT}
  v_add_u32 v{vQB}, {L_QN}, v{vQB}
  v_bfe_u32 v{vT+1}, v0, 4, 2              ; slot
  v_lshl_add_u32 v{vLB}, v{vT}, 2, v{vT+1}
  v_lshlrev_b32 v{vLB}, 2, v{vLB}
  v_add_u32 v{vLB}, {L_LIST}, v{vLB}""")
for k in range(8):
    A(f"  v_mov_b32 v{vD+k}, 0")
A(f"""  s_waitcnt vmcnt(0) lgkmcnt(0)
  s_barrier""")
ts_stamp(86)
A(f"""  s_cmp_eq_u32 s37, 0
  s_cbranch_scc1 B_round_end
  ds_read2_b32 v[{vI[0]}:{vI[0]+1}], v{vLB} offset0:0 offset1:4
  ds_read2_b32 v[{vQO[0]}:{vQO[0]+1}], v{vQB} offset0:0 offset1:1
  s_add_u32 s38, s37, 1
  s_lshr_b32 s38, s38, 1
  s_cmp_eq_u32 s37, 1
  s_cselect_b32 s39, 0x7fff0000, 0""")

def issue_loads(p):
    x = vX[p]
    A(f"  v_or_b32 v{vI[p]}, v{vI[p]}, v{vLX}")
    A(f"  v_or3_b32 v{vI[p]+1}, v{vI[p]+1}, v{vLX}, s39")
    A(f"  buffer_load_dwordx4 v[{x}:{x+3}], v{vI[p]}, s[12:15], 0 offen")
    A(f"  buffer_load_dwordx4 v[{x+4}:{x+7}], v{vI[p]}, s[12:15], 0 offen offset:128")
    A(f"  buffer_load_dwordx4 v[{x+8}:{x+11}], v{vI[p]+1}, s[12:15], 0 offen")
    A(f"  buffer_load_dwordx4 v[{x+12}:{x+15}], v{vI[p]+1}, s[12:15], 0 offen offset:128")

def q_reads(p):
    A(f"  v_add_u32 v{vT+6}, v{vQO[p]}, v{vLQ}")
    A(f"  v_add_u32 v{vT+7}, v{vQO[p]+1}, v{vLQ}")
    A(f"  ds_read_b128 v[{vQ}:{vQ+3}], v{vT+6}")
    A(f"  ds_read_b128 v[{vQ+4}:{vQ+7}], v{vT+6} offset:128")
    A(f"  ds_read_b128 v[{vQ+8}:{vQ+11}], v{vT+7}")
    A(f"  ds_read_b128 v[{vQ+12}:{vQ+15}], v{vT+7} offset:128")

A("  s_waitcnt lgkmcnt(1)")
issue_loads(0)
A(f"  ds_read2_b32 v[{vI[1]}:{vI[1]+1}], v{vLB} offset0:8 offset1:12")
A("  s_waitcnt lgkmcnt(1)")
A(f"  v_mov_b32 v{vPREV}, v{vQO[0]}")
q_reads(0)
A(f"  ds_read2_b32 v[{vQO[1]}:{vQO[1]+1}], v{vQB} offset0:2 offset1:3")
A(f"  v_add_u32 v{vLB}, 64, v{vLB}")
A(f"  v_add_u32 v{vQB}, 16, v{vQB}")

flush_id = [0]
flush_blocks = []
def flush_check(prev, cur):
    fid = flush_id[0]; flush_id[0] += 1
    A(f"  v_cmp_ne_u32 vcc, v{prev}, v{cur}")
    A(f"  s_and_b64 vcc, vcc, s[48:49]")
    A(f"  s_cbranch_scc1 B_flush{fid}")
    A(f"B_flushret{fid}:")
    flush_blocks.append((fid, prev))

def flush_body(prev):
    A(f"  v_add_u32 v{vT+5}, v{prev}, v{vAC}")
    A(f"  s_nop 7")
    for k in range(8):
        A(f"  ds_add_f32 v{vT+5}, v{vD+k} offset:{k*64}")

def body(p, last):
    x = vX[p]
    if not last:
        A(f"  s_and_b32 s39, s37, 1")
        A(f"  s_cmp_eq_u32 s38, 2")
        A(f"  s_cselect_b32 s39, s39, 0")
        A(f"  s_mul_i32 s39, s39, 0x7fff0000")
        A(f"  s_waitcnt lgkmcnt(5)")
        issue_loads(1-p)
        A(f"  ds_read2_b32 v[{vI[p]}:{vI[p]+1}], v{vLB} offset0:0 offset1:4")
        A(f"  s_waitcnt vmcnt(4) lgkmcnt(1)")
    else:
        A(f"  s_waitcnt vmcnt(0) lgkmcnt(0)")
    pa, pb = vT, vT+1
    A(f"  v_dot2_f32_bf16 v{pa}, v{x}, v{vQ}, 0")
    A(f"  v_dot2_f32_bf16 v{pb}, v{x+8}, v{vQ+8}, 0")
    for k in range(1, 8):
        A(f"  v_dot2_f32_bf16 v{pa}, v{x+k}, v{vQ+k}, v{pa}")
        A(f"  v_dot2_f32_bf16 v{pb}, v{x+8+k}, v{vQ+8+k}, v{pb}")
    if not last:
        q_reads(1-p)
    else:
        A("  s_nop 2")
    r = vT+2
    A(f"  v_add_f32_dpp v{r}, v{pa}, v{pa} row_half_mirror row_mask:0xf bank_mask:0x5")
    A(f"  v_add_f32_dpp v{r}, v{pb}, v{pb} row_half_mirror row_mask:0xf bank_mask:0xa")
    A(f"  s_nop 1")
    A(f"  v_add_f32_dpp v{r}, v{r}, v{r} quad_perm:[1,0,3,2] row_mask:0xf bank_mask:0xf")
    A(f"  s_nop 1")
    A(f"  v_add_f32_dpp v{r}, v{r}, v{r} quad_perm:[2,3,0,1] row_mask:0xf bank_mask:0xf")
    A(f"  v_mul_f32 v{r}, s55, v{r}")
    A(f"  v_exp_f32 v{r}, v{r}")
    A(f"  s_nop 0")
    A(f"  v_add_f32 v{r}, 1.0, v{r}")
    A(f"  v_rcp_f32 v{r}, v{r}")
    A(f"  s_nop 0")
    A(f"  v_cvt_pk_bf16_f32 v{r}, v{r}, v{r}")
    A(f"  s_nop 1")
    A(f"  v_mov_b32_dpp v{r+1}, v{r} row_half_mirror row_mask:0xf bank_mask:0xf")
    A(f"  v_and_b32 v{vAa}, v{r}, v{vM}")
    A(f"  v_and_b32 v{vAa+1}, v{r}, v{vM+1}")
    A(f"  v_and_b32 v{vAa+2}, v{r+1}, v{vM+2}")
    A(f"  v_and_b32 v{vAa+3}, v{r+1}, v{vM+3}")
    A(f"  v_and_b32 v{vAb}, v{r+1}, v{vM}")
    A(f"  v_and_b32 v{vAb+1}, v{r+1}, v{vM+1}")
    A(f"  v_and_b32 v{vAb+2}, v{r}, v{vM+2}")
    A(f"  v_and_b32 v{vAb+3}, v{r}, v{vM+3}")
    flush_check(vPREV, vQO[p])
    A(f"  v_mfma_f32_16x16x32_bf16 v[{vD}:{vD+3}], v[{vAa}:{vAa+3}], v[{x}:{x+3}], v[{vD}:{vD+3}]")
    A(f"  v_mfma_f32_16x16x32_bf16 v[{vD+4}:{vD+7}], v[{vAa}:{vAa+3}], v[{x+4}:{x+7}], v[{vD+4}:{vD+7}]")
    flush_check(vQO[p], vQO[p]+1)
    A(f"  v_mfma_f32_16x16x32_bf16 v[{vD}:{vD+3}], v[{vAb}:{vAb+3}], v[{x+8}:{x+11}], v[{vD}:{vD+3}]")
    A(f"  v_mfma_f32_16x16x32_bf16 v[{vD+4}:{vD+7}], v[{vAb}:{vAb+3}], v[{x+12}:{x+15}], v[{vD+4}:{vD+7}]")
    A(f"  v_mov_b32 v{vPREV}, v{vQO[p]+1}")
    if not last:
        A(f"  ds_read2_b32 v[{vQO[p]}:{vQO[p]+1}], v{vQB} offset0:0 offset1:1")
        A(f"  v_add_u32 v{vLB}, 32, v{vLB}")
        A(f"  v_add_u32 v{vQB}, 8, v{vQB}")
        A(f"  s_sub_u32 s38, s38, 1")

A("""  s_cmp_eq_u32 s38, 1
  s_cbranch_scc1 B_last0
B_loop:""")
body(0, False)
A("""  s_cmp_eq_u32 s38, 1
  s_cbranch_scc1 B_last1""")
body(1, False)
A("""  s_cmp_eq_u32 s38, 1
  s_cbranch_scc0 B_loop
B_last0:""")
body(0, True)
A("  s_branch B_final_flush")
A("B_last1:")
body(1, True)
A("B_final_flush:")
A("  s_mov_b64 exec, s[48:49]")
flush_body(vPREV)
A("  s_mov_b64 exec, -1")
A("B_round_end:")
ts_stamp(88)
A(f"""  s_and_b32 s3, s36, 3
  s_lshl_b32 s3, s3, 13
  s_add_u32 s3, s3, {L_WVF}
  v_add_u32 v{vT}, s3, v{vP+3}""")
for k in range(8):
    A(f"  ds_read_b128 v[{60+4*k}:{63+4*k}], v{vT} offset:{k*1024}")
A(f"""  s_or_b32 s56, s50, s51
  s_or_b32 s57, s52, s53
  s_or_b32 s56, s56, s57
  s_cmp_lg_u32 s56, 0
  s_cbranch_scc1 B_more
  s_lshr_b32 s3, s36, 2
  s_lshl_b32 s3, s3, 4
  v_and_b32 v{vT+1}, 15, v0
  v_add_u32 v{vT+1}, s3, v{vT+1}
  v_mul_u32_u24 v{vT+1}, {NS}, v{vT+1}
  v_bfe_u32 v{vT+2}, v0, 4, 2
  v_lshl_add_u32 v{vT+1}, v{vT+2}, 5, v{vT+1}
  s_waitcnt lgkmcnt(0)
  s_barrier""")
for s in range(4):
    A(f"  ds_read_b128 v[{28+8*s}:{31+8*s}], v{vT+1} offset:{s*128}")
    A(f"  ds_read_b128 v[{32+8*s}:{35+8*s}], v{vT+1} offset:{s*128+16}")
A(f"""  s_lshl_b32 s10, s36, 10
  s_add_u32 s10, s10, {L_LIST}
  v_and_b32 v{vT+3}, 15, v0
  v_lshl_add_u32 v{vT+3}, v{vT+3}, 2, v{vT+2}
  v_lshlrev_b32 v{vT+3}, 4, v{vT+3}
  v_add_u32 v{vT+3}, s10, v{vT+3}
  v_add_u32 v{vT+4}, s10, v{vP+3}
  v_lshrrev_b32 v{vT+5}, 2, v{vP+1}
  v_add_u32 v{vT+5}, s3, v{vT+5}
  v_cmp_gt_u32 s[40:41], {NPB}, v{vT+5}
  s_mul_i32 s11, s2, {NPB}
  v_add_u32 v{vT+5}, s11, v{vT+5}
  v_lshlrev_b32 v{vT+5}, 8, v{vT+5}
  v_and_b32 v{vT+6}, 3, v0
  v_lshl_add_u32 v{vT+5}, v{vT+6}, 4, v{vT+5}
  s_and_b32 s11, s36, 3
  s_lshl_b32 s11, s11, 6""")
for s in range(4):
    A(f"  s_waitcnt lgkmcnt({6-2*s})")
    for k in range(4):
        A(f"  v_cvt_pk_bf16_f32 v{92+4*s+k}, v{28+8*s+2*k}, v{28+8*s+2*k+1}")
    A("  s_nop 1")
    for b in range(2):
        d = 8 + 4*b
        a = 60 + 4*(b*4+s)
        c = "0" if s == 0 else f"v[{d}:{d+3}]"
        A(f"  v_mfma_f32_16x16x32_bf16 v[{d}:{d+3}], v[{a}:{a+3}], v[{92+4*s}:{95+4*s}], {c}")
A("  s_nop 7")
for k in range(4):
    A(f"  v_cvt_pk_bf16_f32 v{16+k}, v{8+2*k}, v{9+2*k}")
A(f"""  ds_write_b128 v{vT+3}, v[16:19]
  ds_read_b128 v[28:31], v{vT+4}
  s_mov_b64 exec, s[40:41]
  s_waitcnt lgkmcnt(0)
  buffer_store_dwordx4 v[28:31], v{vT+5}, s[28:31], s11 offen""")
if opt["ts"]:
    A("  s_waitcnt vmcnt(0)")
    ts_stamp(78)
    A("  s_mov_b64 exec, -1")
    ts_store([80, 82, 84, 86, 88, 78], 4, 8, 9, "B_ts")
A("B_done:\n  s_endpgm")
for fid, prev in flush_blocks:
    A(f"B_flush{fid}:")
    A("  s_mov_b64 exec, vcc")
    flush_body(prev)
    for k in range(8):
        A(f"  v_mov_b32 v{vD+k}, 0")
    A("  s_mov_b64 exec, -1")
    A("  s_nop 1")
    A(f"  s_branch B_flushret{fid}")
A(f"""B_more:
  s_waitcnt lgkmcnt(0)
  s_barrier
  s_ff1_i32_b32 s56, s50
  s_cmp_lg_u32 s50, 0
  s_cbranch_scc0 B_m1
  s_bitset0_b32 s50, s56
  s_branch B_mdone
B_m1:
  s_ff1_i32_b32 s56, s51
  s_cmp_lg_u32 s51, 0
  s_cbranch_scc0 B_m2
  s_bitset0_b32 s51, s56
  s_add_u32 s56, s56, 32
  s_branch B_mdone
B_m2:
  s_ff1_i32_b32 s56, s52
  s_cmp_lg_u32 s52, 0
  s_cbranch_scc0 B_m3
  s_bitset0_b32 s52, s56
  s_add_u32 s56, s56, 64
  s_branch B_mdone
B_m3:
  s_ff1_i32_b32 s56, s53
  s_bitset0_b32 s53, s56
  s_add_u32 s56, s56, 96
B_mdone:
  s_lshl_b32 s57, s56, 2
  s_add_u32 s58, s8, {WS_OVFCNT:#x}
  s_addc_u32 s59, s9, 0
  s_load_dword s60, s[58:59], s57
  s_mul_i32 s57, s56, 12800
  buffer_load_dwordx4 v[{vE}:{vE+3}], v{vP}, s[32:35], s57 offen
  v_mov_b32 v{vX[1]}, 0
  v_mov_b32 v{vX[1]+1}, 0
  v_mov_b32 v{vX[1]+2}, 0
  v_mov_b32 v{vX[1]+3}, 0
  v_cmp_gt_u32 vcc, 16, v0
  s_mov_b64 exec, vcc
  ds_write_b128 v{vP}, v[{vX[1]}:{vX[1]+3}] offset:{L_CNT}
  s_mov_b64 exec, -1
  s_mul_i32 s61, s2, {NPB}
  v_lshlrev_b32 v{vT}, 2, v0
  s_waitcnt vmcnt(0) lgkmcnt(0)
  s_min_u32 s60, s60, {CH}""")
for i in range(4):
    A(f"""  v_and_b32 v{vT+1}, 0x3fff, v{vE+i}
  v_subrev_u32 v{vT+1}, s61, v{vT+1}       ; local
  v_lshrrev_b32 v{vE+i}, 14, v{vE+i}
  v_lshl_or_b32 v{vE+i}, v{vE+i}, 8, v{vT+1}
  v_add_u32 v{vT+2}, {i}, v{vT}
  v_cmp_gt_u32 vcc, s60, v{vT+2}
  v_cmp_gt_u32 s[56:57], {NPB}, v{vT+1}
  s_and_b64 vcc, vcc, s[56:57]
  s_nop 1
  v_cndmask_b32 v{vE+i}, -1, v{vE+i}, vcc""")
A("""  s_mov_b32 s62, 1
  s_branch B_round_init""")
kd("fg_main_kernel", NVB, 96)

qs = f"""  s_cmp_lg_u32 s62, 0
  s_cbranch_scc1 B_q_staged
  v_readfirstlane_b32 s50, v{vT+4}
  v_readfirstlane_b32 s51, v{vT+5}
  v_readfirstlane_b32 s52, v{vT+6}
  v_readfirstlane_b32 s53, v{vT+7}
  v_lshrrev_b32 v{vT}, 8, v0               ; tile
  v_and_b32 v{vT+1}, 15, v0
  v_lshl_add_u32 v{vT}, v{vT}, 4, v{vT+1}
  v_cmp_gt_u32 vcc, {NPB}, v{vT}
  v_mul_u32_u24 v{vT}, {NS}, v{vT}
  v_bfe_u32 v{vT+1}, v0, 4, 4              ; chunk
  v_lshl_add_u32 v{vT}, v{vT+1}, 4, v{vT}
  s_mov_b64 exec, vcc
  s_waitcnt vmcnt(2)
  ds_write_b128 v{vT}, v[{vX[0]}:{vX[0]+3}] offset:512
  s_mov_b64 exec, -1
B_q_staged:"""
out = "\n".join(L).replace("@@QSTAGE@@", qs)
out = out.replace("  s_mov_b32 s48, 0x00ff00ff", "  s_mov_b32 s62, 0\n  s_mov_b32 s48, 0x00ff00ff")
print(out)
```

```python
import sys

N = 12500; E = 400000
NPB = 49; NB = 256
CH = 3200; NCH = 125
CAP = 31
MARK = 0xFFFFFFFE
WS_CELLS = 0
WS_Q = 0x400000
WS_WVF = 0x800000
WS_OVF = 0x900000
WS_OVFCNT = 0xB00000
WS_TS = 0x1000000
CELLROW = NCH * 128

opt = dict(ts=0, pf=0)
for a in sys.argv[1:]:
    k, v = a.split("=")
    opt[k] = int(v, 0)

L = []
def A(s):
    for line in s.split("\n"):
        L.append(line)

def kd(name, vg, sg):
    A(f"""
.section .rodata,"a"
.p2align 6
.amdhsa_kernel {name}
  .amdhsa_next_free_vgpr {vg}
  .amdhsa_next_free_sgpr {sg}
  .amdhsa_accum_offset {(vg+3)//4*4}
  .amdhsa_group_segment_fixed_size 0
  .amdhsa_kernarg_size 64
  .amdhsa_user_sgpr_count 2
  .amdhsa_user_sgpr_kernarg_segment_ptr 1
  .amdhsa_system_sgpr_workgroup_id_x 1
.end_amdhsa_kernel
.text""")

def srd(d, lo, hi, nbytes, off=0):
    if off:
        A(f"  s_add_u32 s{d}, s{lo}, {off:#x}")
        A(f"  s_addc_u32 s{d+1}, s{hi}, 0")
    else:
        A(f"  s_mov_b32 s{d}, s{lo}")
        A(f"  s_mov_b32 s{d+1}, s{hi}")
    A(f"  s_mov_b32 s{d+2}, {nbytes}")
    A(f"  s_mov_b32 s{d+3}, 0x20000")

LDS_A = 83968
NS = 784
L_NODE = 0
L_CNT = 50 * NS
L_FLAGS = L_CNT + 256
L_LIST = L_FLAGS + 32
NQMAX = 1088
L_QN = L_LIST + NQMAX * 16
L_WVF = 61440
LDS_B = L_WVF + 32768
DUMMY = 49 * NS
PAD = 0x7FFFFF00

hdr = open("standalone__kernel_systems_refs_featgraph__graph.s.ref").read().split("\n")
for line in hdr:
    if line.startswith("; Override") : break
    A(line)
A(f"; @launch kernel=fg_part_kernel grid=(254,1,1) block=(1024,1,1) lds={LDS_A}")
A(f"; @launch kernel=fg_main_kernel grid=(256,1,1) block=(1024,1,1) lds={LDS_B}")
A('.amdgcn_target "amdgcn-amd-amdhsa--gfx950"')
A(".text")

def ts_stamp(sreg):
    if opt["ts"]:
        A(f"  s_memrealtime s[{sreg}:{sreg+1}]")

def ts_store(regs, slot0, wsl, wsh, label):
    if not opt["ts"]:
        return
    A("  s_waitcnt lgkmcnt(0)")
    A(f"  s_add_u32 s94, s{wsl}, {WS_TS:#x}")
    A(f"  s_addc_u32 s95, s{wsh}, 0")
    A(f"  s_mov_b64 exec, 1")
    A(f"  v_lshrrev_b32 v1, 6, v0")
    A(f"  s_lshl_b32 s96, s2, 4")
    A(f"  v_add_u32 v1, s96, v1")
    A(f"  v_lshlrev_b32 v1, 7, v1")
    for i, r in enumerate(regs):
        A(f"  v_mov_b32 v2, s{r}")
        A(f"  v_mov_b32 v3, s{r+1}")
        A(f"  global_store_dwordx2 v1, v[2:3], s[94:95] offset:{(slot0+i)*8}")
        A(f"  s_nop 1")

A("""
.globl fg_part_kernel
.p2align 8
.type fg_part_kernel,@function
fg_part_kernel:""")
ts_stamp(80)
A("""  s_cmp_ge_u32 s2, 254
  s_cbranch_scc1 A_done
  s_load_dwordx8 s[4:11], s[0:1], 0        ; x, src, dst, wq
  s_load_dwordx2 s[12:13], s[0:1], 32      ; wv
  s_load_dwordx2 s[14:15], s[0:1], 56      ; ws
  v_lshlrev_b32 v1, 4, v0                  ; tid*16
  s_cmp_ge_u32 s2, 125
  s_cbranch_scc1 A_qrole
  ; ---------------- partition role: chunk = s2
  s_mul_i32 s3, s2, 12800
  v_add_u32 v2, s3, v1                     ; byte offset of this thread's 4 edges
  v_mov_b32 v4, -1
  v_mov_b32 v5, -1
  v_mov_b32 v6, -1
  v_mov_b32 v7, -1
  v_mov_b32 v8, 0
  v_mov_b32 v9, 0
  v_mov_b32 v10, 0
  v_mov_b32 v11, 0
  v_cmp_gt_u32 s[20:21], 800, v0 /*PATCH800*/
  s_waitcnt lgkmcnt(0)""".replace("v_cmp_gt_u32 s[20:21], 800, v0 /*PATCH800*/", "v_mov_b32 v3, 800\n  v_cmp_gt_u32 s[20:21], v3, v0"))
srd(24, 8, 9, 1600000)
srd(28, 6, 7, 1600000)
srd(32, 14, 15, NB * CELLROW, WS_CELLS)
srd(36, 14, 15, NCH * CH * 4 + 0x200000 + NCH * 4, WS_OVF)
A(f"""  s_mov_b64 exec, s[20:21]
  s_cbranch_execz A_p_noload
  buffer_load_dwordx4 v[12:15], v2, s[24:27], 0 offen
  buffer_load_dwordx4 v[16:19], v2, s[28:31], 0 offen
A_p_noload:
  s_mov_b64 exec, -1
  ds_write_b128 v1, v[4:7]
  ds_write_b128 v1, v[4:7] offset:16384
  v_cmp_gt_u32 vcc, 65, v0
  s_mov_b64 exec, vcc
  ds_write_b128 v1, v[8:11] offset:32768
  s_mov_b64 exec, -1
  s_waitcnt lgkmcnt(0)
  s_barrier
  s_mov_b64 exec, s[20:21]
  s_cbranch_execz A_p_placed
  s_mov_b32 s16, 21400
  v_mov_b32 v3, 1
  s_waitcnt vmcnt(1)""")
for i in range(4):
    A(f"  v_mul_u32_u24 v{20+i}, s16, v{12+i}")
for i in range(4):
    A(f"  v_lshrrev_b32 v{20+i}, 20, v{20+i}       ; bucket")
for i in range(4):
    A(f"  v_lshlrev_b32 v{24+i}, 2, v{20+i}")
for i in range(4):
    A(f"  ds_add_rtn_u32 v{28+i}, v{24+i}, v3 offset:32768")
for i in range(4):
    A(f"  v_mul_u32_u24 v{24+i}, 49, v{20+i}")
for i in range(4):
    A(f"  v_sub_u32 v{24+i}, v{12+i}, v{24+i}")
A("  s_waitcnt vmcnt(0)")
for i in range(4):
    A(f"  v_lshl_or_b32 v{24+i}, v{16+i}, 8, v{24+i}  ; entry")
A(f"  v_mov_b32 v36, {MARK:#x}")
A("  s_waitcnt lgkmcnt(0)")
for i in range(4):
    A(f"  v_cmp_le_u32 s[{40+2*i}:{41+2*i}], {CAP}, v{28+i}")
for i in range(4):
    A(f"  v_min_u32 v{32+i}, {CAP}, v{28+i}")
for i in range(4):
    A(f"  v_add_u32 v{32+i}, v{32+i}, v{20+i}")
for i in range(4):
    A(f"  v_and_b32 v{32+i}, 31, v{32+i}")
for i in range(4):
    A(f"  v_lshlrev_b32 v{32+i}, 2, v{32+i}")
for i in range(4):
    A(f"  v_lshl_add_u32 v{32+i}, v{20+i}, 7, v{32+i}")
for i in range(4):
    A(f"  v_cndmask_b32 v{24+i}, v{24+i}, v36, s[{40+2*i}:{41+2*i}]")
for i in range(4):
    A(f"  ds_write_b32 v{32+i}, v{24+i}")
A("""  s_or_b64 s[48:49], s[40:41], s[42:43]
  s_or_b64 s[50:51], s[44:45], s[46:47]
  s_or_b64 s[48:49], s[48:49], s[50:51]
  s_cbranch_scc0 A_p_placed
  v_mov_b32 v37, 33792
  s_mul_i32 s17, s2, 12800""")
for i in range(4):
    A(f"""  s_mov_b64 exec, s[{40+2*i}:{41+2*i}]
  s_cbranch_execz A_p_ov{i}
  ds_add_rtn_u32 v38, v37, v3
  v_lshl_or_b32 v39, v{16+i}, 14, v{12+i}
  s_waitcnt lgkmcnt(0)
  v_lshlrev_b32 v38, 2, v38
  buffer_store_dword v39, v38, s[36:39], s17 offen
A_p_ov{i}:""")
A(f"""A_p_placed:
  s_mov_b64 exec, -1
  s_waitcnt lgkmcnt(0)
  s_barrier
  ds_read_b128 v[4:7], v1
  ds_read_b128 v[8:11], v1 offset:16384
  v_mov_b32 v37, 33792
  ds_read_b32 v38, v37
  v_lshrrev_b32 v2, 3, v0
  v_mul_u32_u24 v2, {CELLROW}, v2
  v_and_b32 v3, 7, v0
  v_lshl_add_u32 v2, v3, 4, v2
  s_lshl_b32 s3, s2, 7
  s_add_u32 s16, s3, {128 * CELLROW}
  s_lshl_b32 s17, s2, 2
  s_add_u32 s17, s17, 0x200000
  v_mov_b32 v3, 0
  s_waitcnt lgkmcnt(2)
  buffer_store_dwordx4 v[4:7], v2, s[32:35], s3 offen
  s_waitcnt lgkmcnt(1)
  buffer_store_dwordx4 v[8:11], v2, s[32:35], s16 offen
  v_cmp_eq_u32 vcc, 0, v0
  s_mov_b64 exec, vcc
  s_cbranch_execz A_p_end
  s_waitcnt lgkmcnt(0)
  buffer_store_dword v38, v3, s[36:39], s17 offen
A_p_end:""")
if opt["ts"]:
    A("  s_waitcnt vmcnt(0)")
    ts_stamp(82)
    ts_store([80, 82], 0, 14, 15, "A_p_ts")
A("  s_endpgm")

XL = 40960
A(f"""A_qrole:
  v_lshrrev_b32 v2, 4, v0
  v_and_b32 v3, 15, v0
  v_lshlrev_b32 v3, 4, v3                  ; chunk*16
  v_mul_u32_u24 v4, 320, v2
  v_add_u32 v4, v4, v3
  v_mul_u32_u24 v5, 272, v2
  v_add_u32 v5, v5, v3
  v_and_b32 v6, 63, v0                     ; lane
  v_lshrrev_b32 v7, 6, v0                  ; wave
  v_lshrrev_b32 v8, 4, v6                  ; g
  v_bfe_u32 v9, v6, 2, 2                   ; r
  v_and_b32 v10, 3, v6                     ; c
  v_readfirstlane_b32 s18, v7
  s_waitcnt lgkmcnt(0)
  s_cmp_eq_u32 s2, 253
  s_cbranch_scc1 A_wvrole""")
srd(24, 10, 11, 32768)
srd(28, 4, 5, N * 256)
srd(32, 14, 15, NB * 16384, WS_Q)
A(f"""  s_sub_u32 s3, s2, 125
  s_mul_i32 s16, s3, {98*256}
  s_add_u32 s17, s16, 16384
  buffer_load_dwordx4 v[12:15], v1, s[24:27], 0 offen
  buffer_load_dwordx4 v[20:23], v1, s[28:31], s16 offen
  s_movk_i32 s19, 0x4000
  buffer_load_dwordx4 v[16:19], v1, s[24:27], s19 offen
  buffer_load_dwordx4 v[24:27], v1, s[28:31], s17 offen
  v_lshl_add_u32 v11, v8, 3, v9
  v_mul_u32_u24 v11, 320, v11
  v_lshl_add_u32 v11, v10, 4, v11
  s_and_b32 s20, s18, 3
  s_lshl_b32 s21, s20, 6
  v_add_u32 v11, s21, v11
  s_lshr_b32 s22, s18, 3
  s_mul_i32 s23, s22, 49
  s_bfe_u32 s40, s18, 0x10002
  s_lshl_b32 s41, s40, 5
  s_add_u32 s23, s23, s41
  v_and_b32 v28, 15, v6
  v_add_u32 v28, s23, v28
  v_mul_u32_u24 v28, 272, v28
  v_lshl_add_u32 v28, v8, 4, v28
  v_add_u32 v28, {XL}, v28
  v_add_u32 v5, {XL}, v5
  s_waitcnt vmcnt(3)
  ds_write_b128 v4, v[12:15]
  s_waitcnt vmcnt(2)
  ds_write_b128 v5, v[20:23]
  s_waitcnt vmcnt(1)
  ds_write_b128 v4, v[16:19] offset:{64*320}
  s_waitcnt vmcnt(0)
  ds_write_b128 v5, v[24:27] offset:{64*272}
  s_waitcnt lgkmcnt(0)
  s_barrier""")
for s in range(4):
    for b in range(2):
        r = 32 + (b*4+s)*4
        A(f"  ds_read_b64_tr_b16 v[{r}:{r+1}], v11 offset:{s*10240 + 8*b}")
        A(f"  ds_read_b64_tr_b16 v[{r+2}:{r+3}], v11 offset:{s*10240 + 1280 + 8*b}")
    for ti in range(2):
        r = 64 + (ti*4+s)*4
        A(f"  ds_read_b128 v[{r}:{r+3}], v28 offset:{ti*16*272 + s*64}")
    if s >= 1:
        pass
for s in range(4):
    rem = (3 - s) * 6
    A(f"  s_waitcnt lgkmcnt({min(rem,15)})")
    for ti in range(2):
        for b in range(2):
            d = 96 + (ti*2+b)*4
            a = 32 + (b*4+s)*4
            bb = 64 + (ti*4+s)*4
            c = "0" if s == 0 else f"v[{d}:{d+3}]"
            A(f"  v_mfma_f32_16x16x32_bf16 v[{d}:{d+3}], v[{a}:{a+3}], v[{bb}:{bb+3}], {c}")
A(f"""  ; store offset: bucket*16384 + (tau&3)*4096 + T'*1024 + lane*16
  s_lshl_b32 s3, s3, 1
  s_add_u32 s3, s3, s22                    ; bucket
  s_lshl_b32 s3, s3, 14
  s_lshl_b32 s40, s40, 13
  s_add_u32 s3, s3, s40
  s_lshl_b32 s20, s20, 10
  s_add_u32 s3, s3, s20
  s_add_u32 s16, s3, 4096
  v_lshlrev_b32 v6, 4, v6
  s_nop 7""")
for ti in range(2):
    d = 96 + ti*8
    for k in range(4):
        A(f"  v_cvt_pk_bf16_f32 v{12+ti*4+k}, v{d+2*k}, v{d+2*k+1}")
A("""  buffer_store_dwordx4 v[12:15], v6, s[32:35], s3 offen
  buffer_store_dwordx4 v[16:19], v6, s[32:35], s16 offen""")
if opt["ts"]:
    A("  s_waitcnt vmcnt(0)")
    ts_stamp(82)
    ts_store([80, 82], 0, 14, 15, "A_q_ts")
A("  s_endpgm")
A("A_wvrole:")
srd(24, 12, 13, 32768)
srd(32, 14, 15, 32768, WS_WVF)
A(f"""  buffer_load_dwordx4 v[12:15], v1, s[24:27], 0 offen
  s_movk_i32 s19, 0x4000
  buffer_load_dwordx4 v[16:19], v1, s[24:27], s19 offen
  ; col = 32*(T>>1) + 8c + 4*(T&1)
  v_lshl_add_u32 v11, v8, 3, v9
  s_and_b32 s20, s18, 1
  s_lshl_b32 s20, s20, 6
  v_add_u32 v11, s20, v11
  v_mul_u32_u24 v11, 320, v11
  v_lshl_add_u32 v11, v10, 4, v11
  s_lshr_b32 s21, s18, 2
  s_lshl_b32 s21, s21, 6
  s_bfe_u32 s22, s18, 0x10001
  s_lshl_b32 s22, s22, 3
  s_add_u32 s21, s21, s22
  v_add_u32 v11, s21, v11
  v_lshlrev_b32 v6, 4, v6
  s_lshl_b32 s3, s18, 11                   ; (T*4 + 2*(w&1))*1024 = w*2048
  s_waitcnt vmcnt(1)
  ds_write_b128 v4, v[12:15]
  s_waitcnt vmcnt(0)
  ds_write_b128 v4, v[16:19] offset:{64*320}
  s_waitcnt lgkmcnt(0)
  s_barrier
  ds_read_b64_tr_b16 v[12:13], v11
  ds_read_b64_tr_b16 v[14:15], v11 offset:{4*320}
  ds_read_b64_tr_b16 v[16:17], v11 offset:{32*320}
  ds_read_b64_tr_b16 v[18:19], v11 offset:{36*320}
  s_waitcnt lgkmcnt(2)
  buffer_store_dwordx4 v[12:15], v6, s[32:35], s3 offen
  s_waitcnt lgkmcnt(0)
  buffer_store_dwordx4 v[16:19], v6, s[32:35], s3 offen offset:1024
A_done:
  s_endpgm""")
kd("fg_part_kernel", 112, 100)

vLX = 1
vLQ = 2
vAC = 3
vM = 4
vLB = 8; vQB = 9; vPREV = 10
vI = [12, 14]
vQO = [16, 18]
vT = 20
vAa = 28; vAb = 32
vD = 36
vQ = 44
vX = [60, 76]
vE = 92
vR = 96
vP = 100
NVB = 112

A("""
.globl fg_main_kernel
.p2align 8
.type fg_main_kernel,@function
fg_main_kernel:""")
ts_stamp(80)
A(f"""  s_cmp_ge_u32 s2, 256
  s_cbranch_scc1 B_done
  s_load_dwordx2 s[4:5], s[0:1], 0
  s_load_dwordx2 s[6:7], s[0:1], 40
  s_load_dwordx2 s[8:9], s[0:1], 56
  v_lshlrev_b32 v{vP}, 4, v0               ; tid*16
  v_and_b32 v{vP+1}, 63, v0                ; lane
  v_lshrrev_b32 v{vP+2}, 6, v0             ; wave
  v_mov_b32 v{vE}, -1
  v_mov_b32 v{vE+1}, -1
  v_readfirstlane_b32 s36, v{vP+2}
  v_mov_b32 v{vE+2}, -1
  v_mov_b32 v{vE+3}, -1
  v_mov_b32 v{vT}, 1000
  v_cmp_gt_u32 s[40:41], v{vT}, v0
  s_mul_i32 s3, s2, {CELLROW}
  s_lshl_b32 s10, s2, 14
  s_lshl_b32 s11, s36, 11
  s_add_u32 s37, s11, {L_WVF}
  s_mov_b32 m0, s37
  v_lshlrev_b32 v{vP+3}, 4, v{vP+1}        ; lane*16
  s_waitcnt lgkmcnt(0)""")
srd(16, 8, 9, NB * CELLROW, WS_CELLS)
srd(20, 8, 9, NB * 16384, WS_Q)
srd(24, 8, 9, 32768, WS_WVF)
A(f"""  s_mov_b64 exec, s[40:41]
  buffer_load_dwordx4 v[{vE}:{vE+3}], v{vP}, s[16:19], s3 offen
  s_mov_b64 exec, -1
  buffer_load_dwordx4 v[{vX[0]}:{vX[0]+3}], v{vP}, s[20:23], s10 offen
  buffer_load_dwordx4 v{vP+3}, s[24:27], s11 offen lds
  buffer_load_dwordx4 v{vP+3}, s[24:27], s11 offen offset:1024 lds""")
srd(12, 4, 5, N * 256)
srd(28, 6, 7, N * 256)
srd(32, 8, 9, NCH * CH * 4, WS_OVF)
z = vX[1]
A(f"""  v_mov_b32 v{z}, 0
  v_mov_b32 v{z+1}, 0
  v_mov_b32 v{z+2}, 0
  v_mov_b32 v{z+3}, 0
  v_lshrrev_b32 v{vT}, 5, v0               ; row
  v_mul_u32_u24 v{vT}, {NS}, v{vT}
  v_and_b32 v{vT+1}, 31, v0
  v_lshl_add_u32 v{vT}, v{vT+1}, 4, v{vT}
  ds_write_b128 v{vT}, v[{z}:{z+3}]
  v_mov_b32 v{vT+1}, {18*32}
  v_cmp_gt_u32 vcc, v{vT+1}, v0
  s_mov_b64 exec, vcc
  ds_write_b128 v{vT}, v[{z}:{z+3}] offset:{32*NS}
  v_cmp_gt_u32 vcc, 35, v0
  s_mov_b64 exec, vcc
  ds_write_b128 v{vP}, v[{z}:{z+3}] offset:{DUMMY+512}
  s_mov_b64 exec, -1
  s_mov_b32 s54, {MARK:#x}
  s_mov_b32 s55, 0xbe0293ee                ; -log2(e)/sqrt(128)
  s_mov_b32 s48, 0x00ff00ff
  s_mov_b32 s49, 0xff00ff00
B_round_init:
  v_mov_b32 v{z+4}, {PAD:#x}
  v_mov_b32 v{z+5}, {PAD:#x}
  v_mov_b32 v{z+6}, {PAD:#x}
  v_mov_b32 v{z+7}, {PAD:#x}
  v_mov_b32 v{z+8}, {DUMMY}
  v_mov_b32 v{z+9}, {DUMMY}
  v_mov_b32 v{z+10}, {DUMMY}
  v_mov_b32 v{z+11}, {DUMMY}
  ds_write_b128 v{vP}, v[{z+4}:{z+7}] offset:{L_LIST}
  v_cmp_gt_u32 vcc, {NQMAX-1024}, v0
  s_mov_b64 exec, vcc
  ds_write_b128 v{vP}, v[{z+4}:{z+7}] offset:{L_LIST+16384}
  s_mov_b64 exec, -1
  v_mov_b32 v{vT+1}, {NQMAX//4}
  v_cmp_gt_u32 vcc, v{vT+1}, v0
  s_mov_b64 exec, vcc
  ds_write_b128 v{vP}, v[{z+8}:{z+11}] offset:{L_QN}
  s_mov_b64 exec, -1""")
A(f"""  v_and_b32 v{vLX}, 7, v0
  v_lshrrev_b32 v{vT}, 1, v{vLX}           ; t>>1
  v_and_b32 v{vT+1}, 1, v0
  v_mov_b32 v{vT+2}, 0xffff
  v_lshlrev_b32 v{vT+1}, 4, v{vT+1}
  v_lshlrev_b32 v{vT+2}, v{vT+1}, v{vT+2}""")
for d in range(4):
    A(f"  v_cmp_eq_u32 vcc, {d}, v{vT}")
    A(f"  s_nop 1")
    A(f"  v_cndmask_b32 v{vM+d}, 0, v{vT+2}, vcc")
A(f"""  v_bfe_u32 v{vT}, v0, 4, 1                ; g&1
  v_lshl_add_u32 v{vAC}, v{vLX}, 1, v{vT}  ; kappa
  v_lshlrev_b32 v{vAC}, 4, v{vAC}
  v_lshlrev_b32 v{vLX}, 4, v{vLX}
  v_add_u32 v{vLQ}, 512, v{vLX}
  v_mov_b32 v{vT+3}, 1
  s_waitcnt lgkmcnt(0)
  s_barrier""")
ts_stamp(82)
A(f"""  s_waitcnt vmcnt(3)""")
ts_stamp(84)
for i in range(4):
    A(f"  v_cmp_gt_u32 s[{40+2*i}:{41+2*i}], s54, v{vE+i}")
for i in range(4):
    A(f"  v_and_b32 v{vP+4+i}, 0xff, v{vE+i}")
for i in range(4):
    A(f"  v_lshlrev_b32 v{vP+4+i}, 2, v{vP+4+i}   ; loc*4")
for i in range(4):
    A(f"  s_mov_b64 exec, s[{40+2*i}:{41+2*i}]")
    A(f"  ds_add_rtn_u32 v{vR+i}, v{vP+4+i}, v{vT+3} offset:{L_CNT}")
A(f"  s_mov_b64 exec, -1")
A(f"""  v_cmp_eq_u32 vcc, s54, v{vE}
  v_cmp_eq_u32 s[56:57], s54, v{vE+1}
  v_cmp_eq_u32 s[58:59], s54, v{vE+2}
  v_cmp_eq_u32 s[60:61], s54, v{vE+3}
  s_or_b64 vcc, vcc, s[56:57]
  s_or_b64 s[58:59], s[58:59], s[60:61]
  s_or_b64 vcc, vcc, s[58:59]
  s_cbranch_scc0 B_nomark
  s_mov_b64 exec, vcc
  v_lshrrev_b32 v{vT}, 3, v0               ; chunk
  v_lshlrev_b32 v{vT+1}, v{vT}, v{vT+3}    ; 1 << (chunk&31)
  v_lshrrev_b32 v{vT}, 5, v{vT}
  v_lshlrev_b32 v{vT}, 2, v{vT}
  ds_or_b32 v{vT}, v{vT+1} offset:{L_FLAGS}
  s_mov_b64 exec, -1
B_nomark:""")
A(f"""  s_cmp_eq_u32 s62, 0x5a5a5a5a
  s_cbranch_scc1 B_noq""") if False else None
A(f"""  s_cbranch_execz B_done_never""") if False else None
A(f"""  s_waitcnt lgkmcnt(0)
  s_barrier""")
A(f"""  v_lshlrev_b32 v{vT}, 2, v{vP+1}
  ds_read_b32 v{vT+1}, v{vT} offset:{L_CNT}
  v_mov_b32 v{vT+4}, {L_FLAGS}
  ds_read_b128 v[{vT+4}:{vT+7}], v{vT+4}
  s_waitcnt lgkmcnt(1)
  v_add_u32 v{vT+1}, 3, v{vT+1}
  v_lshrrev_b32 v{vT+1}, 2, v{vT+1}        ; nq
  v_mov_b32 v{vT+2}, v{vT+1}
  s_nop 1
  v_add_u32_dpp v{vT+2}, v{vT+2}, v{vT+2} row_shr:1 row_mask:0xf bank_mask:0xf
  s_nop 1
  v_add_u32_dpp v{vT+2}, v{vT+2}, v{vT+2} row_shr:2 row_mask:0xf bank_mask:0xf
  s_nop 1
  v_add_u32_dpp v{vT+2}, v{vT+2}, v{vT+2} row_shr:4 row_mask:0xf bank_mask:0xf
  s_nop 1
  v_add_u32_dpp v{vT+2}, v{vT+2}, v{vT+2} row_shr:8 row_mask:0xf bank_mask:0xf
  s_nop 1
  v_add_u32_dpp v{vT+2}, v{vT+2}, v{vT+2} row_bcast:15 row_mask:0xa bank_mask:0xf
  s_nop 1
  v_add_u32_dpp v{vT+2}, v{vT+2}, v{vT+2} row_bcast:31 row_mask:0xc bank_mask:0xf
  s_nop 0
  v_sub_u32 v{vT}, v{vT+2}, v{vT+1}        ; qstart
  v_readlane_b32 s37, v{vT+2}, 63          ; T4
  v_lshlrev_b32 v{vT}, 2, v{vT}""")
for i in range(4):
    A(f"  ds_bpermute_b32 v{vP+8+i}, v{vP+4+i}, v{vT}")
A(f"""  s_add_u32 s37, s37, 31
  s_lshr_b32 s37, s37, 5                   ; P
  v_cmp_lt_u32 vcc, s37, v{vT+1}
  s_lshl_b32 s38, s37, 1
  v_cmp_lt_u32 s[56:57], s38, v{vT+1}
  s_cmp_lg_u64 vcc, 0
  s_cselect_b32 s63, 1, 0
  s_cmp_lg_u64 s[56:57], 0
  s_cselect_b32 s63, 2, s63
  s_max_u32 s63, s63, s62
  v_mov_b32 v{vT+3}, {NS//4}""")
for i in range(4):
    A(f"  v_mul_u32_u24 v{vP+4+i}, v{vP+4+i}, v{vT+3}   ; loc*NS")
for i in range(4):
    A(f"  v_and_b32 v{vE+i}, 0xffffff00, v{vE+i}")
A("  s_waitcnt lgkmcnt(0)")
for i in range(4):
    A(f"  v_add_u32 v{vR+i}, v{vR+i}, v{vP+8+i}")
for i in range(4):
    A(f"  v_lshlrev_b32 v{vP+8+i}, 2, v{vR+i}")
for i in range(4):
    A(f"  v_and_b32 v{vR+i}, -4, v{vR+i}")
for i in range(4):
    A(f"  s_mov_b64 exec, s[{40+2*i}:{41+2*i}]")
    A(f"  ds_write_b32 v{vP+8+i}, v{vE+i} offset:{L_LIST}")
    A(f"  ds_write_b32 v{vR+i}, v{vP+4+i} offset:{L_QN}")
A("  s_mov_b64 exec, -1")
A(f"""  s_cmp_lg_u32 s63, 0x600dbeef
  s_cbranch_scc0 B_q_staged""") if False else None
L.append("@@QSTAGE@@")
A(f"""  v_bfe_u32 v{vT}, v0, 3, 1
  s_lshl_b32 s38, s36, 1
  v_add_u32 v{vT}, s38, v{vT}
  v_mul_u32_u24 v{vT}, s37, v{vT}          ; stream*P
  v_lshlrev_b32 v{vQB}, 2, v{vT}
  v_add_u32 v{vQB}, {L_QN}, v{vQB}
  v_bfe_u32 v{vT+1}, v0, 4, 2              ; slot
  v_lshl_add_u32 v{vLB}, v{vT}, 2, v{vT+1}
  v_lshlrev_b32 v{vLB}, 2, v{vLB}
  v_add_u32 v{vLB}, {L_LIST}, v{vLB}""")
for k in range(8):
    A(f"  v_mov_b32 v{vD+k}, 0")
A(f"""  s_waitcnt vmcnt(0) lgkmcnt(0)
  s_barrier""")
ts_stamp(86)
A(f"""  s_cmp_eq_u32 s37, 0
  s_cbranch_scc1 B_round_end
  ds_read2_b32 v[{vI[0]}:{vI[0]+1}], v{vLB} offset0:0 offset1:4
  ds_read2_b32 v[{vQO[0]}:{vQO[0]+1}], v{vQB} offset0:0 offset1:1
  s_add_u32 s38, s37, 1
  s_lshr_b32 s38, s38, 1
  s_cmp_eq_u32 s37, 1
  s_cselect_b32 s39, 0x7fff0000, 0""")

def issue_loads(p):
    x = vX[p]
    A(f"  v_or_b32 v{vI[p]}, v{vI[p]}, v{vLX}")
    A(f"  v_or3_b32 v{vI[p]+1}, v{vI[p]+1}, v{vLX}, s39")
    A(f"  buffer_load_dwordx4 v[{x}:{x+3}], v{vI[p]}, s[12:15], 0 offen")
    A(f"  buffer_load_dwordx4 v[{x+4}:{x+7}], v{vI[p]}, s[12:15], 0 offen offset:128")
    A(f"  buffer_load_dwordx4 v[{x+8}:{x+11}], v{vI[p]+1}, s[12:15], 0 offen")
    A(f"  buffer_load_dwordx4 v[{x+12}:{x+15}], v{vI[p]+1}, s[12:15], 0 offen offset:128")

def q_reads(p):
    A(f"  v_add_u32 v{vT+6}, v{vQO[p]}, v{vLQ}")
    A(f"  v_add_u32 v{vT+7}, v{vQO[p]+1}, v{vLQ}")
    A(f"  ds_read_b128 v[{vQ}:{vQ+3}], v{vT+6}")
    A(f"  ds_read_b128 v[{vQ+4}:{vQ+7}], v{vT+6} offset:128")
    A(f"  ds_read_b128 v[{vQ+8}:{vQ+11}], v{vT+7}")
    A(f"  ds_read_b128 v[{vQ+12}:{vQ+15}], v{vT+7} offset:128")

A("  s_waitcnt lgkmcnt(1)")
issue_loads(0)
A(f"  ds_read2_b32 v[{vI[1]}:{vI[1]+1}], v{vLB} offset0:8 offset1:12")
A("  s_waitcnt lgkmcnt(1)")
A(f"  v_mov_b32 v{vPREV}, v{vQO[0]}")
q_reads(0)
A(f"  ds_read2_b32 v[{vQO[1]}:{vQO[1]+1}], v{vQB} offset0:2 offset1:3")
A(f"  v_add_u32 v{vLB}, 64, v{vLB}")
A(f"  v_add_u32 v{vQB}, 16, v{vQB}")

flush_id = [0]
flush_blocks = []
def flush_check(prev, cur):
    fid = flush_id[0]; flush_id[0] += 1
    A(f"  v_cmp_ne_u32 vcc, v{prev}, v{cur}")
    A(f"  s_and_b64 vcc, vcc, s[48:49]")
    A(f"  s_cbranch_scc1 B_flush{fid}")
    A(f"B_flushret{fid}:")
    flush_blocks.append((fid, prev))

def atomic_adds():
    for k in range(8):
        A(f"  ds_add_f32 v{vT+5}, v{vD+k} offset:{(k//4)*256 + (k%4)*4}")

def flush_body(prev, fid):
    A(f"  v_add_u32 v{vT+5}, v{prev}, v{vAC}")
    A(f"  s_cmp_eq_u32 s63, 2")
    A(f"  s_cbranch_scc1 B_flushat{fid}")
    A(f"  s_nop 5")
    A(f"  ds_write_b128 v{vT+5}, v[{vD}:{vD+3}]")
    A(f"  ds_write_b128 v{vT+5}, v[{vD+4}:{vD+7}] offset:256")
    A(f"B_flushz{fid}:")
    A(f"  s_nop 1")

def body(p, last):
    x = vX[p]
    if not last:
        A(f"  s_and_b32 s39, s37, 1")
        A(f"  s_cmp_eq_u32 s38, 2")
        A(f"  s_cselect_b32 s39, s39, 0")
        A(f"  s_mul_i32 s39, s39, 0x7fff0000")
        A(f"  s_waitcnt lgkmcnt(5)")
        issue_loads(1-p)
        A(f"  ds_read2_b32 v[{vI[p]}:{vI[p]+1}], v{vLB} offset0:0 offset1:4")
        A(f"  s_waitcnt vmcnt(4) lgkmcnt(1)")
    else:
        A(f"  s_waitcnt vmcnt(0) lgkmcnt(0)")
    pa, pb = vT, vT+1
    A(f"  v_dot2_f32_bf16 v{pa}, v{x}, v{vQ}, 0")
    A(f"  v_dot2_f32_bf16 v{pb}, v{x+8}, v{vQ+8}, 0")
    for k in range(1, 8):
        A(f"  v_dot2_f32_bf16 v{pa}, v{x+k}, v{vQ+k}, v{pa}")
        A(f"  v_dot2_f32_bf16 v{pb}, v{x+8+k}, v{vQ+8+k}, v{pb}")
    if not last:
        q_reads(1-p)
    else:
        A("  s_nop 2")
    r = vT+2
    A(f"  v_add_f32_dpp v{r}, v{pa}, v{pa} row_half_mirror row_mask:0xf bank_mask:0x5")
    A(f"  v_add_f32_dpp v{r}, v{pb}, v{pb} row_half_mirror row_mask:0xf bank_mask:0xa")
    A(f"  s_nop 1")
    A(f"  v_add_f32_dpp v{r}, v{r}, v{r} quad_perm:[1,0,3,2] row_mask:0xf bank_mask:0xf")
    A(f"  s_nop 1")
    A(f"  v_add_f32_dpp v{r}, v{r}, v{r} quad_perm:[2,3,0,1] row_mask:0xf bank_mask:0xf")
    A(f"  v_mul_f32 v{r}, s55, v{r}")
    A(f"  v_exp_f32 v{r}, v{r}")
    A(f"  s_nop 0")
    A(f"  v_add_f32 v{r}, 1.0, v{r}")
    A(f"  v_rcp_f32 v{r}, v{r}")
    A(f"  s_nop 0")
    A(f"  v_cvt_pk_bf16_f32 v{r}, v{r}, v{r}")
    A(f"  s_nop 1")
    A(f"  v_mov_b32_dpp v{r+1}, v{r} row_half_mirror row_mask:0xf bank_mask:0xf")
    A(f"  v_and_b32 v{vAa}, v{r}, v{vM}")
    A(f"  v_and_b32 v{vAa+1}, v{r}, v{vM+1}")
    A(f"  v_and_b32 v{vAa+2}, v{r+1}, v{vM+2}")
    A(f"  v_and_b32 v{vAa+3}, v{r+1}, v{vM+3}")
    A(f"  v_and_b32 v{vAb}, v{r+1}, v{vM}")
    A(f"  v_and_b32 v{vAb+1}, v{r+1}, v{vM+1}")
    A(f"  v_and_b32 v{vAb+2}, v{r}, v{vM+2}")
    A(f"  v_and_b32 v{vAb+3}, v{r}, v{vM+3}")
    flush_check(vPREV, vQO[p])
    A(f"  v_mfma_f32_16x16x32_bf16 v[{vD}:{vD+3}], v[{vAa}:{vAa+3}], v[{x}:{x+3}], v[{vD}:{vD+3}]")
    A(f"  v_mfma_f32_16x16x32_bf16 v[{vD+4}:{vD+7}], v[{vAa}:{vAa+3}], v[{x+4}:{x+7}], v[{vD+4}:{vD+7}]")
    flush_check(vQO[p], vQO[p]+1)
    A(f"  v_mfma_f32_16x16x32_bf16 v[{vD}:{vD+3}], v[{vAb}:{vAb+3}], v[{x+8}:{x+11}], v[{vD}:{vD+3}]")
    A(f"  v_mfma_f32_16x16x32_bf16 v[{vD+4}:{vD+7}], v[{vAb}:{vAb+3}], v[{x+12}:{x+15}], v[{vD+4}:{vD+7}]")
    A(f"  v_mov_b32 v{vPREV}, v{vQO[p]+1}")
    if not last:
        A(f"  ds_read2_b32 v[{vQO[p]}:{vQO[p]+1}], v{vQB} offset0:0 offset1:1")
        A(f"  v_add_u32 v{vLB}, 32, v{vLB}")
        A(f"  v_add_u32 v{vQB}, 8, v{vQB}")
        A(f"  s_sub_u32 s38, s38, 1")

A("""  s_cmp_eq_u32 s38, 1
  s_cbranch_scc1 B_last0
B_loop:""")
body(0, False)
A("""  s_cmp_eq_u32 s38, 1
  s_cbranch_scc1 B_last1""")
body(1, False)
A("""  s_cmp_eq_u32 s38, 1
  s_cbranch_scc0 B_loop
B_last0:""")
body(0, True)
A("  s_branch B_final_flush")
A("B_last1:")
body(1, True)
A("B_final_flush:")
A(f"""  v_add_u32 v{vT+5}, v{vPREV}, v{vAC}
  s_waitcnt lgkmcnt(0)
  s_barrier
  s_mov_b64 exec, s[48:49]
  s_cmp_lg_u32 s63, 0
  s_cbranch_scc1 B_final_special
B_final_rmw:
  ds_read_b128 v[{vQ}:{vQ+3}], v{vT+5}
  ds_read_b128 v[{vQ+4}:{vQ+7}], v{vT+5} offset:256
  s_nop 4
  s_waitcnt lgkmcnt(1)""")
for k in range(4):
    A(f"  v_add_f32 v{vD+k}, v{vD+k}, v{vQ+k}")
A(f"  ds_write_b128 v{vT+5}, v[{vD}:{vD+3}]")
A("  s_waitcnt lgkmcnt(1)")
for k in range(4, 8):
    A(f"  v_add_f32 v{vD+k}, v{vD+k}, v{vQ+k}")
A(f"  ds_write_b128 v{vT+5}, v[{vD+4}:{vD+7}] offset:256")
A("  s_cmp_eq_u32 s63, 1")
A("  s_cbranch_scc1 B_final_phase2")
A("B_final_done:")
A("  s_mov_b64 exec, -1")
A("B_round_end:")
ts_stamp(88)
A(f"""  s_and_b32 s3, s36, 3
  s_lshl_b32 s3, s3, 13
  s_add_u32 s3, s3, {L_WVF}
  v_add_u32 v{vT}, s3, v{vP+3}""")
for k in range(8):
    A(f"  ds_read_b128 v[{60+4*k}:{63+4*k}], v{vT} offset:{k*1024}")
A(f"""  s_or_b32 s56, s50, s51
  s_or_b32 s57, s52, s53
  s_or_b32 s56, s56, s57
  s_cmp_lg_u32 s56, 0
  s_cbranch_scc1 B_more
  s_lshr_b32 s3, s36, 2
  s_lshl_b32 s3, s3, 4
  v_and_b32 v{vT+1}, 15, v0
  v_add_u32 v{vT+1}, s3, v{vT+1}
  v_mul_u32_u24 v{vT+1}, {NS}, v{vT+1}
  v_bfe_u32 v{vT+2}, v0, 4, 2
  v_lshl_add_u32 v{vT+1}, v{vT+2}, 5, v{vT+1}
  s_waitcnt lgkmcnt(0)""")
ts_stamp(90)
A("  s_barrier")
ts_stamp(92)
for s in range(4):
    A(f"  ds_read_b128 v[{28+8*s}:{31+8*s}], v{vT+1} offset:{s*128}")
    A(f"  ds_read_b128 v[{32+8*s}:{35+8*s}], v{vT+1} offset:{s*128+16}")
A(f"""  s_lshl_b32 s10, s36, 10
  s_add_u32 s10, s10, {L_LIST}
  v_and_b32 v{vT+3}, 15, v0
  v_lshl_add_u32 v{vT+3}, v{vT+3}, 2, v{vT+2}
  v_lshlrev_b32 v{vT+3}, 4, v{vT+3}
  v_add_u32 v{vT+3}, s10, v{vT+3}
  v_add_u32 v{vT+4}, s10, v{vP+3}
  v_lshrrev_b32 v{vT+5}, 2, v{vP+1}
  v_add_u32 v{vT+5}, s3, v{vT+5}
  v_cmp_gt_u32 s[40:41], {NPB}, v{vT+5}
  s_mul_i32 s11, s2, {NPB}
  v_add_u32 v{vT+5}, s11, v{vT+5}
  v_lshlrev_b32 v{vT+5}, 8, v{vT+5}
  v_and_b32 v{vT+6}, 3, v0
  v_lshl_add_u32 v{vT+5}, v{vT+6}, 4, v{vT+5}
  s_and_b32 s11, s36, 3
  s_lshl_b32 s11, s11, 6""")
for s in range(4):
    A(f"  s_waitcnt lgkmcnt({6-2*s})")
    for k in range(4):
        A(f"  v_cvt_pk_bf16_f32 v{92+4*s+k}, v{28+8*s+2*k}, v{28+8*s+2*k+1}")
    A("  s_nop 1")
    for b in range(2):
        d = 8 + 4*b
        a = 60 + 4*(b*4+s)
        c = "0" if s == 0 else f"v[{d}:{d+3}]"
        A(f"  v_mfma_f32_16x16x32_bf16 v[{d}:{d+3}], v[{a}:{a+3}], v[{92+4*s}:{95+4*s}], {c}")
A("  s_nop 7")
for k in range(4):
    A(f"  v_cvt_pk_bf16_f32 v{16+k}, v{8+2*k}, v{9+2*k}")
A(f"""  ds_write_b128 v{vT+3}, v[16:19]
  ds_read_b128 v[28:31], v{vT+4}
  s_mov_b64 exec, s[40:41]
  s_waitcnt lgkmcnt(0)
  buffer_store_dwordx4 v[28:31], v{vT+5}, s[28:31], s11 offen""")
if opt["ts"]:
    ts_stamp(76)
    A("  s_waitcnt vmcnt(0)")
    ts_stamp(78)
    A("  s_mov_b64 exec, -1")
    ts_store([80, 82, 84, 86, 88, 90, 92, 76, 78], 4, 8, 9, "B_ts")
A("B_done:\n  s_endpgm")
for fid, prev in flush_blocks:
    A(f"B_flush{fid}:")
    A("  s_mov_b64 exec, vcc")
    flush_body(prev, fid)
    for k in range(8):
        A(f"  v_mov_b32 v{vD+k}, 0")
    A("  s_mov_b64 exec, -1")
    A("  s_nop 1")
    A(f"  s_branch B_flushret{fid}")
for fid, prev in flush_blocks:
    A(f"B_flushat{fid}:")
    A("  s_nop 5")
    atomic_adds()
    A(f"  s_branch B_flushz{fid}")
A("""B_final_phase2:
  s_waitcnt lgkmcnt(0)
  s_barrier
  s_mov_b32 exec_lo, 0
  s_mov_b32 exec_hi, s49
  s_mov_b32 s63, 0
  s_branch B_final_rmw
B_final_special:
  s_cmp_eq_u32 s63, 2
  s_cbranch_scc1 B_final_atomic
  s_mov_b32 exec_hi, 0
  s_branch B_final_rmw""")
A("B_final_atomic:")
A("  s_nop 7")
atomic_adds()
A("  s_branch B_final_done")
A(f"""B_more:
  s_waitcnt lgkmcnt(0)
  s_barrier
  s_ff1_i32_b32 s56, s50
  s_cmp_lg_u32 s50, 0
  s_cbranch_scc0 B_m1
  s_bitset0_b32 s50, s56
  s_branch B_mdone
B_m1:
  s_ff1_i32_b32 s56, s51
  s_cmp_lg_u32 s51, 0
  s_cbranch_scc0 B_m2
  s_bitset0_b32 s51, s56
  s_add_u32 s56, s56, 32
  s_branch B_mdone
B_m2:
  s_ff1_i32_b32 s56, s52
  s_cmp_lg_u32 s52, 0
  s_cbranch_scc0 B_m3
  s_bitset0_b32 s52, s56
  s_add_u32 s56, s56, 64
  s_branch B_mdone
B_m3:
  s_ff1_i32_b32 s56, s53
  s_bitset0_b32 s53, s56
  s_add_u32 s56, s56, 96
B_mdone:
  s_lshl_b32 s57, s56, 2
  s_add_u32 s58, s8, {WS_OVFCNT:#x}
  s_addc_u32 s59, s9, 0
  s_load_dword s60, s[58:59], s57
  s_mul_i32 s57, s56, 12800
  buffer_load_dwordx4 v[{vE}:{vE+3}], v{vP}, s[32:35], s57 offen
  v_mov_b32 v{vX[1]}, 0
  v_mov_b32 v{vX[1]+1}, 0
  v_mov_b32 v{vX[1]+2}, 0
  v_mov_b32 v{vX[1]+3}, 0
  v_cmp_gt_u32 vcc, 16, v0
  s_mov_b64 exec, vcc
  ds_write_b128 v{vP}, v[{vX[1]}:{vX[1]+3}] offset:{L_CNT}
  s_mov_b64 exec, -1
  s_mul_i32 s61, s2, {NPB}
  v_lshlrev_b32 v{vT}, 2, v0
  s_waitcnt vmcnt(0) lgkmcnt(0)
  s_min_u32 s60, s60, {CH}""")
for i in range(4):
    A(f"""  v_and_b32 v{vT+1}, 0x3fff, v{vE+i}
  v_subrev_u32 v{vT+1}, s61, v{vT+1}       ; local
  v_lshrrev_b32 v{vE+i}, 14, v{vE+i}
  v_lshl_or_b32 v{vE+i}, v{vE+i}, 8, v{vT+1}
  v_add_u32 v{vT+2}, {i}, v{vT}
  v_cmp_gt_u32 vcc, s60, v{vT+2}
  v_cmp_gt_u32 s[56:57], {NPB}, v{vT+1}
  s_and_b64 vcc, vcc, s[56:57]
  s_nop 1
  v_cndmask_b32 v{vE+i}, -1, v{vE+i}, vcc""")
A("""  s_mov_b32 s62, 2
  s_branch B_round_init""")
kd("fg_main_kernel", NVB, 100)

qs = f"""  s_cmp_lg_u32 s62, 0
  s_cbranch_scc1 B_q_staged
  v_readfirstlane_b32 s50, v{vT+4}
  v_readfirstlane_b32 s51, v{vT+5}
  v_readfirstlane_b32 s52, v{vT+6}
  v_readfirstlane_b32 s53, v{vT+7}
  v_lshrrev_b32 v{vT}, 8, v0               ; tile
  v_and_b32 v{vT+1}, 15, v0
  v_lshl_add_u32 v{vT}, v{vT}, 4, v{vT+1}
  v_cmp_gt_u32 vcc, {NPB}, v{vT}
  v_mul_u32_u24 v{vT}, {NS}, v{vT}
  v_bfe_u32 v{vT+1}, v0, 4, 4              ; chunk
  v_lshl_add_u32 v{vT}, v{vT+1}, 4, v{vT}
  s_mov_b64 exec, vcc
  s_waitcnt vmcnt(2)
  ds_write_b128 v{vT}, v[{vX[0]}:{vX[0]+3}] offset:512
  s_mov_b64 exec, -1
B_q_staged:"""
out = "\n".join(L).replace("@@QSTAGE@@", qs)
out = out.replace("  s_mov_b32 s48, 0x00ff00ff", "  s_mov_b32 s62, 0\n  s_mov_b32 s48, 0x00ff00ff")
print(out)
```

```python
import sys

N = 12500; E = 400000
NPB = 49; NB = 256
CH = 3200; NCH = 125
CAP = 31
MARK = 0xFFFFFFFE
WS_CELLS = 0
WS_OVF = 0x900000
OVFCNT_REL = 0x200000
WS_TS = 0x1000000
CELLROW = NCH * 128

opt = dict(ts=0, split=0, pf=2, pfl=0, sc=1, limit=20000)
for a in sys.argv[1:]:
    k, v = a.split("=")
    opt[k] = int(v, 0)
SPLIT = opt["split"]
SC1 = " sc1" if (opt["sc"] and not SPLIT) or opt["sc"] == 2 else ""
SC1L = " sc1" if not SPLIT else ""

L = []
def A(s):
    for line in s.split("\n"):
        L.append(line)

def kd(name, vg, sg):
    A(f"""
.section .rodata,"a"
.p2align 6
.amdhsa_kernel {name}
  .amdhsa_next_free_vgpr {vg}
  .amdhsa_next_free_sgpr {sg}
  .amdhsa_accum_offset {(vg+3)//4*4}
  .amdhsa_group_segment_fixed_size 0
  .amdhsa_kernarg_size 64
  .amdhsa_user_sgpr_count 2
  .amdhsa_user_sgpr_kernarg_segment_ptr 1
  .amdhsa_system_sgpr_workgroup_id_x 1
.end_amdhsa_kernel
.text""")

def srd(d, lo, nbytes, off=0):
    if off:
        A(f"  s_add_u32 s{d}, s{lo}, {off:#x}")
        A(f"  s_addc_u32 s{d+1}, s{lo+1}, 0")
    else:
        A(f"  s_mov_b32 s{d}, s{lo}")
        A(f"  s_mov_b32 s{d+1}, s{lo+1}")
    A(f"  s_mov_b32 s{d+2}, {nbytes}")
    A(f"  s_mov_b32 s{d+3}, 0x20000")

NS = 784
L_CNT = 50 * NS
L_FLAGS = L_CNT + 256
L_LIST = L_FLAGS + 32
NQMAX = 1088
L_QN = L_LIST + NQMAX * 16
L_W = 61440
L_XO = L_W + 32768
L_PC = L_XO + 16384
L_PCNT = L_PC + 32768
LDS_F = L_PCNT + 1024 + 64
L_WV = L_PC
LDS_B = L_PC + 32768
DUMMY = 49 * NS
PAD = 0x7FFFFF00

sX, sSRC, sDST, sWQ = 4, 6, 8, 10
sWV, sOUT, sDBG, sWS = 64, 66, 68, 70
rX, rCELL, rWQ, rWV, rOUT, rOVF, rDST, rSRC = 12, 16, 20, 24, 28, 32, 72, 76
vLX, vLQ, vAC, vM, vLB, vQB, vPREV, vL16 = 1, 2, 3, 4, 8, 9, 10, 11
vI = [12, 14]; vQO = [16, 18]; vT = 20
vAa = 28; vAb = 32; vD = 36; vQ = 44; vX = [60, 76]
vE = 92; vR = 96; vP = 100
vT16 = 108; vLANE = 109; vPF = 110
NV = 112

KN = "standalone__kernel_systems_refs_featgraph__graph_kernel"
hdr = open("standalone__kernel_systems_refs_featgraph__graph.s.ref").read().split("\n")
for line in hdr:
    if line.startswith("; Override"): break
    A(line)
if SPLIT:
    A(f"; @launch kernel=fg_part_kernel grid=(256,1,1) block=(1024,1,1) lds={LDS_F}")
    A(f"; @launch kernel=fg_main_kernel grid=(256,1,1) block=(1024,1,1) lds={LDS_B}")
else:
    A(f"; @launch grid=(256,1,1) block=(1024,1,1) lds={LDS_F}")
A('.amdgcn_target "amdgcn-amd-amdhsa--gfx950"')
A(".text")

def ts(i):
    if opt["ts"]:
        A(f"  s_memrealtime s[{80+2*i}:{81+2*i}]")

def ts_store(idx, slot0):
    if not opt["ts"]:
        return
    A("  s_waitcnt lgkmcnt(0)")
    A(f"  s_add_u32 s98, s{sWS}, {WS_TS:#x}")
    A(f"  s_addc_u32 s99, s{sWS+1}, 0")
    A(f"  s_mov_b64 exec, 1")
    A(f"  v_lshrrev_b32 v1, 6, v0")
    A(f"  s_lshl_b32 s3, s2, 4")
    A(f"  v_add_u32 v1, s3, v1")
    A(f"  v_lshlrev_b32 v1, 7, v1")
    for j, i in enumerate(idx):
        A(f"  v_mov_b32 v2, s{80+2*i}")
        A(f"  v_mov_b32 v3, s{81+2*i}")
        A(f"  global_store_dwordx2 v1, v[2:3], s[98:99] offset:{(slot0+j)*8}")
        A(f"  s_nop 1")

def entry(name, done):
    A(f"""
.globl {name}
.p2align 8
.type {name},@function
{name}:""")
    ts(0)
    A(f"""  s_cmp_ge_u32 s2, 256
  s_cbranch_scc1 {done}
  s_load_dwordx8 s[4:11], s[0:1], 0
  s_load_dwordx8 s[64:71], s[0:1], 32
  v_lshlrev_b32 v{vT16}, 4, v0
  v_and_b32 v{vLANE}, 63, v0
  v_lshrrev_b32 v{vT}, 6, v0
  v_lshlrev_b32 v{vL16}, 4, v{vLANE}
  v_readfirstlane_b32 s36, v{vT}""")

pD, pS, pB, pE, pR, pA, pM = 60, 64, 68, 72, 76, 80, 84
def part_issue(lbl):
    srd(rDST, sDST, 1600000)
    srd(rSRC, sSRC, 1600000)
    A(f"""  s_mul_i32 s3, s2, 12800
  v_mov_b32 v{pM}, 800
  v_cmp_gt_u32 s[56:57], v{pM}, v0
  s_mov_b64 exec, s[56:57]
  s_cbranch_execz {lbl}
  buffer_load_dwordx4 v[{pD}:{pD+3}], v{vT16}, s[{rDST}:{rDST+3}], s3 offen
  buffer_load_dwordx4 v[{pS}:{pS+3}], v{vT16}, s[{rSRC}:{rSRC+3}], s3 offen
{lbl}:
  s_mov_b64 exec, -1""")

def part_init():
    A(f"""  v_mov_b32 v24, -1
  v_mov_b32 v25, -1
  v_mov_b32 v26, -1
  v_mov_b32 v27, -1
  v_add_u32 v{pM+1}, {L_PC}, v{vT16}
  ds_write_b128 v{pM+1}, v[24:27]
  ds_write_b128 v{pM+1}, v[24:27] offset:16384
  v_cmp_gt_u32 vcc, 65, v0
  s_mov_b64 exec, vcc
  ds_write_b128 v{pM+1}, v[12:15] offset:32768
  s_mov_b64 exec, -1""")

def part_body(nyounger, pre):
    A(f"""  s_mov_b64 exec, s[56:57]
  s_cbranch_execz {pre}_placed
  s_mov_b32 s58, 21400
  v_mov_b32 v{pM}, 1
  v_mov_b32 v{pM+2}, {L_PCNT}
  v_mov_b32 v{pM+3}, {L_PC}
  s_waitcnt vmcnt({nyounger+1})""")
    for i in range(4):
        A(f"  v_mul_u32_u24 v{pB+i}, s58, v{pD+i}")
    for i in range(4):
        A(f"  v_lshrrev_b32 v{pB+i}, 20, v{pB+i}")
    for i in range(4):
        A(f"  v_lshl_add_u32 v{pA+i}, v{pB+i}, 2, v{pM+2}")
    for i in range(4):
        A(f"  ds_add_rtn_u32 v{pR+i}, v{pA+i}, v{pM}")
    for i in range(4):
        A(f"  v_mul_u32_u24 v{pE+i}, 49, v{pB+i}")
    for i in range(4):
        A(f"  v_sub_u32 v{pE+i}, v{pD+i}, v{pE+i}")
    A(f"  s_waitcnt vmcnt({nyounger})")
    for i in range(4):
        A(f"  v_lshl_or_b32 v{pE+i}, v{pS+i}, 8, v{pE+i}")
    A(f"  v_mov_b32 v{pM+2}, {MARK:#x}")
    for i in range(4):
        A(f"  s_waitcnt lgkmcnt({3-i})")
        A(f"  v_cmp_le_u32 s[{40+2*i}:{41+2*i}], {CAP}, v{pR+i}")
        A(f"  v_min_u32 v{pR+i}, {CAP}, v{pR+i}")
        A(f"  v_add_u32 v{pR+i}, v{pR+i}, v{pB+i}")
        A(f"  v_and_b32 v{pR+i}, 31, v{pR+i}")
        A(f"  v_lshl_add_u32 v{pA+i}, v{pB+i}, 7, v{pM+3}")
        A(f"  v_lshl_add_u32 v{pA+i}, v{pR+i}, 2, v{pA+i}")
        A(f"  v_cndmask_b32 v{pE+i}, v{pE+i}, v{pM+2}, s[{40+2*i}:{41+2*i}]")
    for i in range(4):
        A(f"  ds_write_b32 v{pA+i}, v{pE+i}")
    A(f"""  s_or_b64 s[58:59], s[40:41], s[42:43]
  s_or_b64 s[60:61], s[44:45], s[46:47]
  s_or_b64 s[58:59], s[58:59], s[60:61]
  s_cbranch_scc1 {pre}_ovf
{pre}_placed:
  s_mov_b64 exec, -1""")

def part_ovf(pre):
    A(f"""{pre}_ovf:
  v_mov_b32 v{pM+2}, {L_PCNT+1024}
  s_mul_i32 s3, s2, 12800""")
    for i in range(4):
        A(f"""  s_mov_b64 exec, s[{40+2*i}:{41+2*i}]
  s_cbranch_execz {pre}_ov{i}
  ds_add_rtn_u32 v{pA}, v{pM+2}, v{pM}
  v_lshl_or_b32 v{pA+1}, v{pS+i}, 14, v{pD+i}
  s_waitcnt lgkmcnt(0)
  v_lshlrev_b32 v{pA}, 2, v{pA}
  buffer_store_dword v{pA+1}, v{pA}, s[{rOVF}:{rOVF+3}], s3 offen{SC1}
{pre}_ov{i}:""")
    A(f"  s_branch {pre}_placed")

def part_out(pre):
    A(f"""  ds_read_b128 v[{pD}:{pD+3}], v{pM+1}
  ds_read_b128 v[{pS}:{pS+3}], v{pM+1} offset:16384
  v_mov_b32 v{pM+2}, {L_PCNT+1024}
  ds_read_b32 v{pB}, v{pM+2}
  v_lshrrev_b32 v{pB+1}, 3, v0
  v_mul_u32_u24 v{pB+1}, {CELLROW}, v{pB+1}
  v_and_b32 v{pB+2}, 7, v0
  v_lshl_add_u32 v{pB+1}, v{pB+2}, 4, v{pB+1}
  s_lshl_b32 s3, s2, 7
  s_add_u32 s58, s3, {128 * CELLROW}
  s_lshl_b32 s59, s2, 2
  s_add_u32 s59, s59, {OVFCNT_REL:#x}
  v_mov_b32 v{pB+2}, 0
  s_waitcnt lgkmcnt(2)
  buffer_store_dwordx4 v[{pD}:{pD+3}], v{pB+1}, s[{rCELL}:{rCELL+3}], s3 offen{SC1}
  s_waitcnt lgkmcnt(1)
  buffer_store_dwordx4 v[{pS}:{pS+3}], v{pB+1}, s[{rCELL}:{rCELL+3}], s58 offen{SC1}
  s_cmp_lg_u32 s36, 0
  s_cbranch_scc1 {pre}_nocnt
  s_mov_b64 exec, 1
  s_waitcnt lgkmcnt(0)
  buffer_store_dword v{pB}, v{pB+2}, s[{rOVF}:{rOVF+3}], s59 offen{SC1}
  s_mov_b64 exec, -1
{pre}_nocnt:""")

def prefetch(part, lbl):
    A(f"""  s_cmp_eq_u32 s36, 0
  s_cbranch_scc1 {lbl}
  s_sub_u32 s3, s2, 128
  s_lshr_b32 s3, s3, 3
  s_mul_i32 s3, s3, {1563*128}
  v_subrev_u32 v{vPF+1}, 64, v0""")
    if part == 1:
        A(f"""  s_add_u32 s3, s3, {960*128}
  v_mov_b32 v{vPF}, {1563-960}
  v_cmp_gt_u32 vcc, v{vPF}, v{vPF+1}
  s_mov_b64 exec, vcc
  s_cbranch_execz {lbl}""")
    A(f"""  v_lshlrev_b32 v{vPF+1}, 7, v{vPF+1}
  buffer_load_dword v{vPF}, v{vPF+1}, s[{rX}:{rX+3}], s3 offen
{lbl}:
  s_mov_b64 exec, -1""")

def dma_w(r, base):
    A(f"""  v_lshrrev_b32 v24, 4, v{vLANE}
  v_lshlrev_b32 v24, 6, v24                ; 4*(row&3)*16
  v_xor_b32 v24, v24, v{vL16}
  s_lshl_b32 s58, s36, 10
  s_add_u32 s59, s58, {base}
  s_mov_b32 m0, s59
  s_add_u32 s60, s58, 16384
  buffer_load_dwordx4 v24, s[{r}:{r+3}], s58 offen lds
  s_add_u32 s59, s59, 16384
  s_mov_b32 m0, s59
  s_nop 0
  buffer_load_dwordx4 v24, s[{r}:{r+3}], s60 offen lds""")

def w_frag_addr(dst, base):
    A(f"""  v_bfe_u32 v{dst}, v0, 2, 2               ; r
  s_and_b32 s58, s36, 3
  v_xor_b32 v{dst+1}, s58, v{dst}          ; T'^r
  v_lshlrev_b32 v{dst+1}, 6, v{dst+1}
  v_lshl_add_u32 v{dst+1}, v{dst}, 8, v{dst+1}
  v_and_b32 v{dst}, 3, v0                  ; c
  v_lshl_add_u32 v{dst+1}, v{dst}, 4, v{dst+1}
  v_bfe_u32 v{dst}, v0, 4, 2               ; g
  v_lshl_add_u32 v{dst}, v{dst}, 11, v{dst+1}
  v_add_u32 v{dst}, {base}, v{dst}""")

def w_frag_reads(addr, base, s):
    for b in range(2):
        r = base + (b*4+s)*4
        A(f"  ds_read_b64_tr_b16 v[{r}:{r+1}], v{addr} offset:{s*8192 + 8*b}")
        A(f"  ds_read_b64_tr_b16 v[{r+2}:{r+3}], v{addr} offset:{s*8192 + 1024 + 8*b}")

def main_issue():
    A(f"""  ; own x rows: wave w -> rows 4w..4w+3, chunk swizzle p ^ (row&15)
  v_lshrrev_b32 v24, 4, v{vLANE}
  s_lshl_b32 s58, s36, 2
  v_add_u32 v24, s58, v24
  v_and_b32 v24, 15, v24
  v_lshlrev_b32 v24, 4, v24
  v_xor_b32 v24, v24, v{vL16}
  s_lshl_b32 s58, s36, 10
  s_add_u32 s59, s58, {L_XO}
  s_mov_b32 m0, s59
  s_mul_i32 s60, s2, {NPB*256}
  s_add_u32 s60, s60, s58
  buffer_load_dwordx4 v24, s[{rX}:{rX+3}], s60 offen lds""")
    dma_w(rWQ, L_W)

def main_init():
    A(f"""  v_lshrrev_b32 v{vT+4}, 5, v0
  v_mul_u32_u24 v{vT+4}, {NS}, v{vT+4}
  v_and_b32 v{vT+5}, 31, v0
  v_lshl_add_u32 v{vT+4}, v{vT+5}, 4, v{vT+4}
  ds_write_b128 v{vT+4}, v[12:15]
  v_mov_b32 v{vT+5}, {18*32}
  v_cmp_gt_u32 vcc, v{vT+5}, v0
  s_mov_b64 exec, vcc
  ds_write_b128 v{vT+4}, v[12:15] offset:{32*NS}
  v_cmp_gt_u32 vcc, 35, v0
  s_mov_b64 exec, vcc
  ds_write_b128 v{vT16}, v[12:15] offset:{DUMMY+512}
  s_mov_b64 exec, -1""")

def list_init():
    A(f"""  v_mov_b32 v16, {PAD:#x}
  v_mov_b32 v17, {PAD:#x}
  v_mov_b32 v18, {PAD:#x}
  v_mov_b32 v19, {PAD:#x}
  v_mov_b32 v20, {DUMMY}
  v_mov_b32 v21, {DUMMY}
  v_mov_b32 v22, {DUMMY}
  v_mov_b32 v23, {DUMMY}
  ds_write_b128 v{vT16}, v[16:19] offset:{L_LIST}
  v_cmp_gt_u32 vcc, {NQMAX-1024}, v0
  s_mov_b64 exec, vcc
  ds_write_b128 v{vT16}, v[16:19] offset:{L_LIST+16384}
  s_mov_b64 exec, -1
  v_mov_b32 v24, {NQMAX//4}
  v_cmp_gt_u32 vcc, v24, v0
  s_mov_b64 exec, vcc
  ds_write_b128 v{vT16}, v[20:23] offset:{L_QN}
  s_mov_b64 exec, -1""")

def consts():
    A(f"""  v_and_b32 v{vLX}, 7, v0
  v_lshrrev_b32 v24, 1, v{vLX}
  v_and_b32 v25, 1, v0
  v_mov_b32 v26, 0xffff
  v_lshlrev_b32 v25, 4, v25
  v_lshlrev_b32 v26, v25, v26
  v_cmp_eq_u32 vcc, 0, v24
  v_cmp_eq_u32 s[58:59], 1, v24
  v_cmp_eq_u32 s[60:61], 2, v24
  v_cndmask_b32 v{vM}, 0, v26, vcc
  v_cmp_eq_u32 vcc, 3, v24
  v_cndmask_b32 v{vM+1}, 0, v26, s[58:59]
  v_cndmask_b32 v{vM+2}, 0, v26, s[60:61]
  v_bfe_u32 v24, v0, 4, 1
  v_cndmask_b32 v{vM+3}, 0, v26, vcc
  v_lshl_add_u32 v{vAC}, v{vLX}, 1, v24
  v_lshlrev_b32 v{vAC}, 4, v{vAC}
  v_lshlrev_b32 v{vLX}, 4, v{vLX}
  v_add_u32 v{vLQ}, 512, v{vLX}
  s_mov_b32 s54, {MARK:#x}
  s_mov_b32 s55, 0xbe0293ee                ; -log2(e)/sqrt(128)
  s_mov_b32 s62, 0
  s_mov_b32 s48, 0x00ff00ff
  s_mov_b32 s49, 0xff00ff00""")

def q_compute():
    w_frag_addr(24, L_W)
    A(f"""  s_lshr_b32 s59, s36, 2
  s_lshl_b32 s59, s59, 4
  v_and_b32 v25, 15, v0                    ; j
  v_bfe_u32 v27, v0, 4, 2                  ; g
  v_xor_b32 v26, v27, v25
  v_lshlrev_b32 v26, 4, v26
  v_add_u32 v25, s59, v25
  v_lshl_add_u32 v26, v25, 8, v26
  v_add_u32 v26, {L_XO}, v26""")
    for s in range(4):
        w_frag_reads(24, 28, s)
        if s:
            A(f"  v_xor_b32 v{20+s}, {s*64}, v26")
            A(f"  ds_read_b128 v[{92+4*s}:{95+4*s}], v{20+s}")
        else:
            A(f"  ds_read_b128 v[92:95], v26")
    A(f"""  v_cmp_gt_u32 vcc, {NPB}, v25
  v_mul_u32_u24 v25, {NS}, v25
  s_lshl_b32 s58, s58, 6
  v_lshl_add_u32 v25, v27, 4, v25
  v_add_u32 v25, s58, v25""")
    for s in range(4):
        A(f"  s_waitcnt lgkmcnt({min(15,(3-s)*5)})")
        for b in range(2):
            d = 12 + 4*b
            a = 28 + (b*4+s)*4
            c = "0" if s == 0 else f"v[{d}:{d+3}]"
            A(f"  v_mfma_f32_16x16x32_bf16 v[{d}:{d+3}], v[{a}:{a+3}], v[{92+4*s}:{95+4*s}], {c}")
    A("  s_nop 7")
    for k in range(4):
        A(f"  v_cvt_pk_bf16_f32 v{20+k}, v{12+2*k}, v{13+2*k}")
    A(f"""  s_mov_b64 exec, vcc
  ds_write_b128 v25, v[20:23] offset:512
  s_mov_b64 exec, -1""")

def zeros():
    for k in range(12, 16):
        A(f"  v_mov_b32 v{k}, 0")

if SPLIT:
    entry("fg_part_kernel", "A_done")
    A("  s_waitcnt lgkmcnt(0)")
    A("  s_cmp_ge_u32 s2, 125")
    A("  s_cbranch_scc1 A_pf")
    part_issue("A_noload")
    srd(rCELL, sWS, NB * CELLROW, WS_CELLS)
    srd(rOVF, sWS, OVFCNT_REL + NCH * 4, WS_OVF)
    zeros()
    part_init()
    A("  s_waitcnt lgkmcnt(0)\n  s_barrier")
    part_body(0, "A")
    A("  s_waitcnt lgkmcnt(0)\n  s_barrier")
    part_out("A")
    if opt["ts"]:
        A("  s_waitcnt vmcnt(0)")
        ts(1)
        ts_store([0, 1], 12)
    A("  s_endpgm")
    part_ovf("A")
    A("A_pf:")
    A("  s_cmp_lt_u32 s2, 128\n  s_cbranch_scc1 A_done")
    srd(rX, sX, N * 256)
    if opt["pf"] >= 1: prefetch(0, "A_pf0")
    if opt["pf"] >= 2: prefetch(1, "A_pf1")
    if opt["ts"]:
        A("  s_waitcnt vmcnt(0)")
        ts(1)
        ts_store([0, 1], 14)
    A("A_done:\n  s_endpgm")
    kd("fg_part_kernel", NV, 100)

MK = "fg_main_kernel" if SPLIT else KN
entry(MK, "B_done")
zeros()
for k in range(4):
    A(f"  v_mov_b32 v{vE+k}, -1") if SPLIT else None
A("  s_waitcnt lgkmcnt(0)")
srd(rX, sX, N * 256)
srd(rCELL, sWS, NB * CELLROW, WS_CELLS)

def cells_load():
    A(f"""  v_mov_b32 v24, 1000
  v_cmp_gt_u32 vcc, v24, v0
  s_mul_i32 s3, s2, {CELLROW}
  s_mov_b64 exec, vcc
  buffer_load_dwordx4 v[60:63], v{vT16}, s[{rCELL}:{rCELL+3}], s3 offen{SC1L}
  s_mov_b64 exec, -1""")

if SPLIT:
    for k in range(4):
        A(f"  v_mov_b32 v{60+k}, -1")
    cells_load()
    srd(rWQ, sWQ, 32768)
    main_issue()
    srd(rWV, sWV, 32768)
    dma_w(rWV, L_WV)
    srd(rOUT, sOUT, N * 256)
    srd(rOVF, sWS, OVFCNT_REL + NCH * 4, WS_OVF)
    srd(rDST, sDST, 1600000)
    srd(rSRC, sSRC, 1600000)
    main_init()
    list_init()
    consts()
    A("  s_waitcnt vmcnt(0) lgkmcnt(0)\n  s_barrier")
    ts(1)
    q_compute()
    ts(2)
    ts(3)
    ts(4)
    for k in range(4):
        A(f"  v_mov_b32 v{vE+k}, v{60+k}")
else:
    A("  s_cmp_ge_u32 s2, 125\n  s_cbranch_scc1 F_nopart")
    part_issue("F_noload")
    srd(rWQ, sWQ, 32768)
    main_issue()
    part_init()
    srd(rOVF, sWS, OVFCNT_REL + NCH * 4, WS_OVF)
    A("  s_waitcnt lgkmcnt(0)\n  s_barrier")
    part_body(3, "F")
    main_init()
    list_init()
    A("  s_waitcnt vmcnt(0) lgkmcnt(0)\n  s_barrier")
    part_out("F")
    ts(1)
    q_compute()
    consts()
    A(f"""  s_waitcnt vmcnt(0)
  s_barrier
  s_cmp_lg_u32 s36, 0
  s_cbranch_scc1 F_flagged
  s_lshl_b32 s3, s2, 1
  v_mov_b32 v24, s3
  v_mov_b32 v25, 1
  s_mov_b64 exec, 1
  global_store_short v24, v25, s[{sDBG}:{sDBG+1}] sc1
  s_mov_b64 exec, -1
F_flagged:""")
    srd(rWV, sWV, 32768)
    dma_w(rWV, L_WV)
    A("  s_branch F_join\nF_nopart:")
    srd(rWQ, sWQ, 32768)
    main_issue()
    srd(rWV, sWV, 32768)
    dma_w(rWV, L_WV)
    srd(rDST, sDST, 1600000)
    srd(rSRC, sSRC, 1600000)
    srd(rOVF, sWS, OVFCNT_REL + NCH * 4, WS_OVF)
    A("  s_cmp_lt_u32 s2, 128\n  s_cbranch_scc1 F_nopf")
    npf = 0
    if opt["pf"] >= 1: prefetch(0, "F_pf0")
    if opt["pf"] >= 2 and not opt["pfl"]: prefetch(1, "F_pf1")
    A("F_nopf:")
    main_init()
    list_init()
    consts()
    A("@@DMAWAIT@@")
    A("  s_barrier")
    ts(1)
    q_compute()
    if opt["pf"] >= 2 and opt["pfl"]:
        A("  s_cmp_lt_u32 s2, 128\n  s_cbranch_scc1 F_join")
        prefetch(1, "F_pf1")
    A("F_join:")
    ts(2)
    srd(rOUT, sOUT, N * 256)
    for k in range(4):
        A(f"  v_mov_b32 v{60+k}, -1")
    A(f"""  s_cmp_lg_u32 s36, 0
  s_cbranch_scc1 F_polled
  v_lshlrev_b32 v24, 2, v{vLANE}
  v_mov_b32 v25, 0x00010001
  v_cmp_gt_u32 vcc, 62, v{vLANE}
  v_cmp_eq_u32 s[58:59], 62, v{vLANE}
  s_nop 1
  v_cndmask_b32 v25, 0, v25, vcc
  v_cndmask_b32 v25, v25, 1, s[58:59]
  s_mov_b32 s60, {opt["limit"]}
F_poll:
  global_load_dword v26, v24, s[{sDBG}:{sDBG+1}] sc1
  s_waitcnt vmcnt(0)
  v_cmp_ne_u32 vcc, v26, v25
  s_cmp_eq_u64 vcc, 0
  s_cbranch_scc1 F_polled
  s_sleep 1
  s_sub_u32 s60, s60, 1
  s_cmp_lg_u32 s60, 0
  s_cbranch_scc1 F_poll
  v_mov_b32 v24, {L_FLAGS+16}
  v_mov_b32 v25, 1
  ds_write_b32 v24, v25
F_polled:
  s_waitcnt lgkmcnt(0)
  s_barrier""")
    ts(3)
    cells_load()
    A(f"""  v_mov_b32 v24, {L_FLAGS+16}
  ds_read_b32 v25, v24
  s_waitcnt lgkmcnt(0)
  v_readfirstlane_b32 s63, v25
  s_cmp_lg_u32 s63, 0
  s_cbranch_scc1 B_raw
  s_waitcnt vmcnt(0)""")
    ts(4)
    for k in range(4):
        A(f"  v_mov_b32 v{vE+k}, v{60+k}")

A("B_build:")
A(f"  v_mov_b32 v{vT+3}, 1")
for i in range(4):
    A(f"  v_cmp_gt_u32 s[{40+2*i}:{41+2*i}], s54, v{vE+i}")
for i in range(4):
    A(f"  v_and_b32 v{vP+i}, 0xff, v{vE+i}")
for i in range(4):
    A(f"  v_lshlrev_b32 v{vP+i}, 2, v{vP+i}")
for i in range(4):
    A(f"  s_mov_b64 exec, s[{40+2*i}:{41+2*i}]")
    A(f"  ds_add_rtn_u32 v{vR+i}, v{vP+i}, v{vT+3} offset:{L_CNT}")
A(f"""  s_mov_b64 exec, -1
  v_cmp_eq_u32 vcc, s54, v{vE}
  v_cmp_eq_u32 s[56:57], s54, v{vE+1}
  v_cmp_eq_u32 s[58:59], s54, v{vE+2}
  v_cmp_eq_u32 s[60:61], s54, v{vE+3}
  s_or_b64 vcc, vcc, s[56:57]
  s_or_b64 s[58:59], s[58:59], s[60:61]
  s_or_b64 vcc, vcc, s[58:59]
  s_cbranch_scc1 B_mark
B_nomark:""")
for i in range(4):
    A(f"  v_and_b32 v{vE+i}, 0xffffff00, v{vE+i}")
A(f"""  v_lshlrev_b32 v{vT}, 2, v{vLANE}
  v_mov_b32 v{vT+4}, {L_FLAGS}
  s_waitcnt lgkmcnt(0)
  s_barrier
  ds_read_b32 v{vT+1}, v{vT} offset:{L_CNT}
  ds_read_b128 v[{vT+4}:{vT+7}], v{vT+4}""")
A(f"""  s_waitcnt lgkmcnt(1)
  v_add_u32 v{vT+1}, 3, v{vT+1}
  v_lshrrev_b32 v{vT+1}, 2, v{vT+1}        ; nq
  v_mov_b32 v{vT+2}, v{vT+1}
  s_nop 1
  v_add_u32_dpp v{vT+2}, v{vT+2}, v{vT+2} row_shr:1 row_mask:0xf bank_mask:0xf
  s_nop 1
  v_add_u32_dpp v{vT+2}, v{vT+2}, v{vT+2} row_shr:2 row_mask:0xf bank_mask:0xf
  s_nop 1
  v_add_u32_dpp v{vT+2}, v{vT+2}, v{vT+2} row_shr:4 row_mask:0xf bank_mask:0xf
  s_nop 1
  v_add_u32_dpp v{vT+2}, v{vT+2}, v{vT+2} row_shr:8 row_mask:0xf bank_mask:0xf
  s_nop 1
  v_add_u32_dpp v{vT+2}, v{vT+2}, v{vT+2} row_bcast:15 row_mask:0xa bank_mask:0xf
  s_nop 1
  v_add_u32_dpp v{vT+2}, v{vT+2}, v{vT+2} row_bcast:31 row_mask:0xc bank_mask:0xf
  s_nop 0
  v_sub_u32 v{vT}, v{vT+2}, v{vT+1}        ; qstart
  v_readlane_b32 s37, v{vT+2}, 63          ; T4
  v_lshlrev_b32 v{vT}, 2, v{vT}            ; qstart*4""")
for i in range(4):
    A(f"  ds_bpermute_b32 v{vP+4+i}, v{vP+i}, v{vT}")
A(f"""  s_add_u32 s37, s37, 31
  s_lshr_b32 s37, s37, 5                   ; P
  v_cmp_lt_u32 vcc, s37, v{vT+1}
  s_lshl_b32 s38, s37, 1
  v_cmp_lt_u32 s[56:57], s38, v{vT+1}
  s_cmp_lg_u64 vcc, 0
  s_cselect_b32 s63, 1, 0
  s_cmp_lg_u64 s[56:57], 0
  s_cselect_b32 s63, 2, s63
  s_max_u32 s63, s63, s62
  s_lshl_b32 s38, s36, 2
  v_add_u32 v{vT+2}, s38, v{vT}
  v_mul_u32_u24 v{vT+3}, {NS}, v{vLANE}
  s_mov_b32 s38, s36
B_qn:
  v_cmp_lt_u32 vcc, s38, v{vT+1}
  s_add_u32 s38, s38, 16
  v_cmp_lt_u32 s[56:57], s38, v{vT+1}
  s_mov_b64 exec, vcc
  ds_write_b32 v{vT+2}, v{vT+3} offset:{L_QN}
  s_mov_b64 exec, -1
  v_add_u32 v{vT+2}, 64, v{vT+2}
  s_cmp_lg_u64 s[56:57], 0
  s_cbranch_scc1 B_qn
  v_bfe_u32 v{vT}, v0, 3, 1
  s_lshl_b32 s38, s36, 1
  v_add_u32 v{vT}, s38, v{vT}
  v_mul_u32_u24 v{vT}, s37, v{vT}          ; stream*P
  v_lshlrev_b32 v{vQB}, 2, v{vT}
  v_add_u32 v{vQB}, {L_QN}, v{vQB}
  v_bfe_u32 v{vT+1}, v0, 4, 2
  v_lshl_add_u32 v{vLB}, v{vT}, 2, v{vT+1}
  v_lshlrev_b32 v{vLB}, 2, v{vLB}
  v_add_u32 v{vLB}, {L_LIST}, v{vLB}
  s_waitcnt lgkmcnt(0)""")
for i in range(4):
    A(f"  v_add_lshl_u32 v{vR+i}, v{vR+i}, v{vP+4+i}, 2")
for i in range(4):
    A(f"  s_mov_b64 exec, s[{40+2*i}:{41+2*i}]")
    A(f"  ds_write_b32 v{vR+i}, v{vE+i} offset:{L_LIST}")
A("  s_mov_b64 exec, -1")
A(f"""  s_cmp_lg_u32 s62, 0
  s_cbranch_scc1 B_noflags
  v_readfirstlane_b32 s50, v{vT+4}
  v_readfirstlane_b32 s51, v{vT+5}
  v_readfirstlane_b32 s52, v{vT+6}
  v_readfirstlane_b32 s53, v{vT+7}
B_noflags:""")
for k in range(8):
    A(f"  v_mov_b32 v{vD+k}, 0")
A(f"""  s_add_u32 s38, s37, 1
  s_lshr_b32 s38, s38, 1
  s_and_b32 s39, s37, 1
  s_waitcnt lgkmcnt(0)
  s_barrier""")
ts(5)
A(f"""  s_cmp_eq_u32 s37, 0
  s_cbranch_scc1 B_round_end
  ds_read2_b32 v[{vI[0]}:{vI[0]+1}], v{vLB} offset0:0 offset1:4
  ds_read2_b32 v[{vQO[0]}:{vQO[0]+1}], v{vQB} offset0:0 offset1:1""")

def loads_a(p):
    x = vX[p]
    A(f"  v_or_b32 v{vI[p]}, v{vI[p]}, v{vLX}")
    A(f"  buffer_load_dwordx4 v[{x}:{x+3}], v{vI[p]}, s[{rX}:{rX+3}], 0 offen")
    A(f"  buffer_load_dwordx4 v[{x+4}:{x+7}], v{vI[p]}, s[{rX}:{rX+3}], 0 offen offset:128")
def loads_b(p):
    x = vX[p]
    A(f"  v_or_b32 v{vI[p]+1}, v{vI[p]+1}, v{vLX}")
    A(f"  buffer_load_dwordx4 v[{x+8}:{x+11}], v{vI[p]+1}, s[{rX}:{rX+3}], 0 offen")
    A(f"  buffer_load_dwordx4 v[{x+12}:{x+15}], v{vI[p]+1}, s[{rX}:{rX+3}], 0 offen offset:128")

def q_reads(p):
    A(f"  v_add_u32 v{vT+6}, v{vQO[p]}, v{vLQ}")
    A(f"  v_add_u32 v{vT+7}, v{vQO[p]+1}, v{vLQ}")
    A(f"  ds_read_b128 v[{vQ}:{vQ+3}], v{vT+6}")
    A(f"  ds_read_b128 v[{vQ+4}:{vQ+7}], v{vT+6} offset:128")
    A(f"  ds_read_b128 v[{vQ+8}:{vQ+11}], v{vT+7}")
    A(f"  ds_read_b128 v[{vQ+12}:{vQ+15}], v{vT+7} offset:128")

A("  s_waitcnt lgkmcnt(1)")
loads_a(0)
A("  s_cmp_eq_u32 s37, 1\n  s_cbranch_scc1 B_p1")
loads_b(0)
A("B_p1:")
A(f"  ds_read2_b32 v[{vI[1]}:{vI[1]+1}], v{vLB} offset0:8 offset1:12")
A("  s_waitcnt lgkmcnt(1)")
A(f"  v_mov_b32 v{vPREV}, v{vQO[0]}")
q_reads(0)
A(f"  ds_read2_b32 v[{vQO[1]}:{vQO[1]+1}], v{vQB} offset0:2 offset1:3")
A(f"  v_add_u32 v{vLB}, 64, v{vLB}")
A(f"  v_add_u32 v{vQB}, 16, v{vQB}")

flush_id = [0]
flush_blocks = []
skip_blocks = []
def flush_check(prev, cur):
    fid = flush_id[0]; flush_id[0] += 1
    A(f"  v_cmp_ne_u32 vcc, v{prev}, v{cur}")
    A(f"  s_and_b64 vcc, vcc, s[48:49]")
    A(f"  s_cbranch_scc1 B_flush{fid}")
    A(f"B_flushret{fid}:")
    flush_blocks.append((fid, prev))

def atomic_adds():
    for k in range(8):
        A(f"  ds_add_f32 v{vT+5}, v{vD+k} offset:{(k//4)*256 + (k%4)*4}")

def body(p, last):
    x = vX[p]
    if not last:
        A(f"  s_sub_u32 s38, s38, 1")
        A(f"  s_cmp_eq_u32 s38, s39")
        A(f"  s_waitcnt lgkmcnt(5)")
        loads_a(1-p)
        A(f"  s_cbranch_scc1 B_skip{p}")
        loads_b(1-p)
        A(f"  ds_read2_b32 v[{vI[p]}:{vI[p]+1}], v{vLB} offset0:0 offset1:4")
        A(f"  s_waitcnt vmcnt(4) lgkmcnt(1)")
        A(f"B_skipret{p}:")
        skip_blocks.append(p)
    else:
        A(f"  s_waitcnt vmcnt(0) lgkmcnt(0)")
    pa, pb = vT, vT+1
    A(f"  v_dot2_f32_bf16 v{pa}, v{x}, v{vQ}, 0")
    A(f"  v_dot2_f32_bf16 v{pb}, v{x+8}, v{vQ+8}, 0")
    for k in range(1, 8):
        A(f"  v_dot2_f32_bf16 v{pa}, v{x+k}, v{vQ+k}, v{pa}")
        A(f"  v_dot2_f32_bf16 v{pb}, v{x+8+k}, v{vQ+8+k}, v{pb}")
    if not last:
        q_reads(1-p)
    else:
        A("  s_nop 2")
    r = vT+2
    A(f"  v_add_f32_dpp v{r}, v{pa}, v{pa} row_half_mirror row_mask:0xf bank_mask:0x5")
    A(f"  v_add_f32_dpp v{r}, v{pb}, v{pb} row_half_mirror row_mask:0xf bank_mask:0xa")
    A(f"  s_nop 1")
    A(f"  v_add_f32_dpp v{r}, v{r}, v{r} quad_perm:[1,0,3,2] row_mask:0xf bank_mask:0xf")
    A(f"  s_nop 1")
    A(f"  v_add_f32_dpp v{r}, v{r}, v{r} quad_perm:[2,3,0,1] row_mask:0xf bank_mask:0xf")
    A(f"  v_mul_f32 v{r}, s55, v{r}")
    A(f"  v_exp_f32 v{r}, v{r}")
    A(f"  s_nop 0")
    A(f"  v_add_f32 v{r}, 1.0, v{r}")
    A(f"  v_rcp_f32 v{r}, v{r}")
    A(f"  s_nop 0")
    A(f"  v_cvt_pk_bf16_f32 v{r}, v{r}, v{r}")
    A(f"  s_nop 1")
    A(f"  v_mov_b32_dpp v{r+1}, v{r} row_half_mirror row_mask:0xf bank_mask:0xf")
    A(f"  v_and_b32 v{vAa}, v{r}, v{vM}")
    A(f"  v_and_b32 v{vAa+1}, v{r}, v{vM+1}")
    A(f"  v_and_b32 v{vAa+2}, v{r+1}, v{vM+2}")
    A(f"  v_and_b32 v{vAa+3}, v{r+1}, v{vM+3}")
    A(f"  v_and_b32 v{vAb}, v{r+1}, v{vM}")
    A(f"  v_and_b32 v{vAb+1}, v{r+1}, v{vM+1}")
    A(f"  v_and_b32 v{vAb+2}, v{r}, v{vM+2}")
    A(f"  v_and_b32 v{vAb+3}, v{r}, v{vM+3}")
    flush_check(vPREV, vQO[p])
    A(f"  v_mfma_f32_16x16x32_bf16 v[{vD}:{vD+3}], v[{vAa}:{vAa+3}], v[{x}:{x+3}], v[{vD}:{vD+3}]")
    A(f"  v_mfma_f32_16x16x32_bf16 v[{vD+4}:{vD+7}], v[{vAa}:{vAa+3}], v[{x+4}:{x+7}], v[{vD+4}:{vD+7}]")
    if last:
        A(f"  v_add_u32 v{vT+5}, v{vQO[p]}, v{vAC}")
        A(f"  s_cmp_lg_u32 s39, 0")
        A(f"  s_cbranch_scc1 B_final_flush")
    flush_check(vQO[p], vQO[p]+1)
    A(f"  v_mfma_f32_16x16x32_bf16 v[{vD}:{vD+3}], v[{vAb}:{vAb+3}], v[{x+8}:{x+11}], v[{vD}:{vD+3}]")
    A(f"  v_mfma_f32_16x16x32_bf16 v[{vD+4}:{vD+7}], v[{vAb}:{vAb+3}], v[{x+12}:{x+15}], v[{vD+4}:{vD+7}]")
    if not last:
        A(f"  v_mov_b32 v{vPREV}, v{vQO[p]+1}")
        A(f"  ds_read2_b32 v[{vQO[p]}:{vQO[p]+1}], v{vQB} offset0:0 offset1:1")
        A(f"  v_add_u32 v{vLB}, 32, v{vLB}")
        A(f"  v_add_u32 v{vQB}, 8, v{vQB}")
    else:
        A(f"  v_add_u32 v{vT+5}, v{vQO[p]+1}, v{vAC}")

A("""  s_cmp_eq_u32 s38, 1
  s_cbranch_scc1 B_last0
B_loop:""")
body(0, False)
A("""  s_cmp_eq_u32 s38, 1
  s_cbranch_scc1 B_last1""")
body(1, False)
A("""  s_cmp_eq_u32 s38, 1
  s_cbranch_scc0 B_loop
B_last0:""")
body(0, True)
A("  s_branch B_final_flush")
A("B_last1:")
body(1, True)
A("B_final_flush:")
ts(6)
w_frag_addr(vT, L_WV)
for s in range(4):
    w_frag_reads(vT, 60, s)
A(f"""  s_waitcnt lgkmcnt(0)
  s_barrier
  s_mov_b64 exec, s[48:49]
  s_cmp_lg_u32 s63, 0
  s_cbranch_scc1 B_final_special
B_final_rmw:
  ds_read_b128 v[{vQ}:{vQ+3}], v{vT+5}
  ds_read_b128 v[{vQ+4}:{vQ+7}], v{vT+5} offset:256
  s_waitcnt lgkmcnt(1)""")
for k in range(4):
    A(f"  v_add_f32 v{vD+k}, v{vD+k}, v{vQ+k}")
A(f"  ds_write_b128 v{vT+5}, v[{vD}:{vD+3}]")
A("  s_waitcnt lgkmcnt(1)")
for k in range(4, 8):
    A(f"  v_add_f32 v{vD+k}, v{vD+k}, v{vQ+k}")
A(f"  ds_write_b128 v{vT+5}, v[{vD+4}:{vD+7}] offset:256")
A("""  s_cmp_eq_u32 s63, 1
  s_cbranch_scc1 B_final_phase2
B_final_done:
  s_mov_b64 exec, -1
B_round_fin:""")
A(f"""  s_or_b32 s56, s50, s51
  s_or_b32 s57, s52, s53
  s_or_b32 s56, s56, s57
  s_cbranch_scc1 B_more
  s_lshr_b32 s3, s36, 2
  s_lshl_b32 s3, s3, 4
  v_and_b32 v{vT+1}, 15, v0
  v_add_u32 v{vT+1}, s3, v{vT+1}
  v_mul_u32_u24 v{vT+1}, {NS}, v{vT+1}
  v_bfe_u32 v{vT+2}, v0, 4, 2
  v_lshl_add_u32 v{vT+1}, v{vT+2}, 5, v{vT+1}
  s_lshl_b32 s10, s36, 10
  s_add_u32 s10, s10, {L_LIST}
  v_and_b32 v{vT+3}, 15, v0
  v_lshl_add_u32 v{vT+3}, v{vT+3}, 2, v{vT+2}
  v_lshlrev_b32 v{vT+3}, 4, v{vT+3}
  v_add_u32 v{vT+3}, s10, v{vT+3}
  v_add_u32 v{vT+4}, s10, v{vL16}
  v_lshrrev_b32 v{vT+5}, 2, v{vLANE}
  v_add_u32 v{vT+5}, s3, v{vT+5}
  v_cmp_gt_u32 s[40:41], {NPB}, v{vT+5}
  s_mul_i32 s11, s2, {NPB}
  v_add_u32 v{vT+5}, s11, v{vT+5}
  v_lshlrev_b32 v{vT+5}, 8, v{vT+5}
  v_and_b32 v{vT+6}, 3, v0
  v_lshl_add_u32 v{vT+5}, v{vT+6}, 4, v{vT+5}
  s_and_b32 s11, s36, 3
  s_lshl_b32 s11, s11, 6
  s_waitcnt lgkmcnt(0)
  s_barrier""")
ts(7)
for s in range(4):
    A(f"  ds_read_b128 v[{28+8*s}:{31+8*s}], v{vT+1} offset:{s*128}")
    A(f"  ds_read_b128 v[{32+8*s}:{35+8*s}], v{vT+1} offset:{s*128+16}")
for s in range(4):
    A(f"  s_waitcnt lgkmcnt({6-2*s})")
    for k in range(4):
        A(f"  v_cvt_pk_bf16_f32 v{92+4*s+k}, v{28+8*s+2*k}, v{28+8*s+2*k+1}")
    A("  s_nop 1")
    for b in range(2):
        d = 12 + 4*b
        a = 60 + 4*(b*4+s)
        c = "0" if s == 0 else f"v[{d}:{d+3}]"
        A(f"  v_mfma_f32_16x16x32_bf16 v[{d}:{d+3}], v[{a}:{a+3}], v[{92+4*s}:{95+4*s}], {c}")
A("  s_nop 7")
for k in range(4):
    A(f"  v_cvt_pk_bf16_f32 v{4+k}, v{12+2*k}, v{13+2*k}")
A(f"""  ds_write_b128 v{vT+3}, v[4:7]
  ds_read_b128 v[28:31], v{vT+4}
  s_mov_b64 exec, s[40:41]
  s_waitcnt lgkmcnt(0)
  buffer_store_dwordx4 v[28:31], v{vT+5}, s[{rOUT}:{rOUT+3}], s11 offen""")
if opt["ts"]:
    A("  s_waitcnt vmcnt(0)")
    ts(8)
    A("  s_mov_b64 exec, -1")
    ts_store(range(9), 0)
A("B_done:\n  s_endpgm")

A(f"""B_round_end:
  s_waitcnt vmcnt(0)
  s_barrier""")
w_frag_addr(vT, L_WV)
for s in range(4):
    w_frag_reads(vT, 60, s)
A("  s_branch B_round_fin")
for p in skip_blocks:
    A(f"""B_skip{p}:
  ds_read2_b32 v[{vI[p]}:{vI[p]+1}], v{vLB} offset0:0 offset1:4
  s_waitcnt vmcnt(2) lgkmcnt(1)
  s_branch B_skipret{p}""")
for fid, prev in flush_blocks:
    A(f"""B_flush{fid}:
  s_mov_b64 exec, vcc
  v_add_u32 v{vT+4}, v{prev}, v{vAC}
  s_cmp_ge_u32 s63, 2
  s_cbranch_scc1 B_flushat{fid}
  s_nop 4
  ds_write_b128 v{vT+4}, v[{vD}:{vD+3}]
  ds_write_b128 v{vT+4}, v[{vD+4}:{vD+7}] offset:256
B_flushz{fid}:
  s_nop 1""")
    for k in range(8):
        A(f"  v_mov_b32 v{vD+k}, 0")
    A("  s_mov_b64 exec, -1")
    A("  s_nop 0")
    A(f"  s_branch B_flushret{fid}")
for fid, prev in flush_blocks:
    A(f"B_flushat{fid}:")
    A("  s_nop 4")
    for k in range(8):
        A(f"  ds_add_f32 v{vT+4}, v{vD+k} offset:{(k//4)*256 + (k%4)*4}")
    A(f"  s_branch B_flushz{fid}")
A("""B_final_phase2:
  s_waitcnt lgkmcnt(0)
  s_barrier
  s_mov_b32 exec_lo, 0
  s_mov_b32 exec_hi, s49
  s_mov_b32 s63, 0
  s_branch B_final_rmw
B_final_special:
  s_cmp_ge_u32 s63, 2
  s_cbranch_scc1 B_final_atomic
  s_mov_b32 exec_hi, 0
  s_branch B_final_rmw
B_final_atomic:""")
atomic_adds()
A("  s_branch B_final_done")
A(f"""B_mark:
  s_mov_b64 exec, vcc
  v_lshrrev_b32 v{vT}, 3, v0
  v_lshlrev_b32 v{vT+1}, v{vT}, v{vT+3}
  v_lshrrev_b32 v{vT}, 5, v{vT}
  v_lshlrev_b32 v{vT}, 2, v{vT}
  ds_or_b32 v{vT}, v{vT+1} offset:{L_FLAGS}
  s_mov_b64 exec, -1
  s_branch B_nomark""")
if not SPLIT:
    part_ovf("F")
    A(f"""B_raw:
  s_mov_b32 s50, -1
  s_mov_b32 s51, -1
  s_mov_b32 s52, -1
  s_mov_b32 s53, 0x1fffffff
  s_mov_b32 s62, 3""")
A(f"""B_more:
  s_waitcnt vmcnt(0) lgkmcnt(0)
  s_barrier
  s_ff1_i32_b32 s56, s50
  s_cmp_lg_u32 s50, 0
  s_cbranch_scc0 B_m1
  s_bitset0_b32 s50, s56
  s_branch B_mdone
B_m1:
  s_ff1_i32_b32 s56, s51
  s_cmp_lg_u32 s51, 0
  s_cbranch_scc0 B_m2
  s_bitset0_b32 s51, s56
  s_add_u32 s56, s56, 32
  s_branch B_mdone
B_m2:
  s_ff1_i32_b32 s56, s52
  s_cmp_lg_u32 s52, 0
  s_cbranch_scc0 B_m3
  s_bitset0_b32 s52, s56
  s_add_u32 s56, s56, 64
  s_branch B_mdone
B_m3:
  s_ff1_i32_b32 s56, s53
  s_bitset0_b32 s53, s56
  s_add_u32 s56, s56, 96
B_mdone:
  s_mul_i32 s57, s56, 12800
  s_cmp_eq_u32 s62, 3
  s_cbranch_scc1 B_mraw
  s_mov_b32 s62, 2
  s_lshl_b32 s58, s56, 2
  s_add_u32 s58, s58, {OVFCNT_REL:#x}
  v_mov_b32 v24, 0
  buffer_load_dword v25, v24, s[{rOVF}:{rOVF+3}], s58 offen{SC1L}
  buffer_load_dwordx4 v[{vE}:{vE+3}], v{vT16}, s[{rOVF}:{rOVF+3}], s57 offen{SC1L}
  s_waitcnt vmcnt(0)
  v_readfirstlane_b32 s60, v25
  s_branch B_mgot
B_mraw:
  buffer_load_dwordx4 v[{vE}:{vE+3}], v{vT16}, s[{rDST}:{rDST+3}], s57 offen
  buffer_load_dwordx4 v[{vR}:{vR+3}], v{vT16}, s[{rSRC}:{rSRC+3}], s57 offen
  s_movk_i32 s60, {CH}
  s_waitcnt vmcnt(0)""")
for i in range(4):
    A(f"  v_lshl_or_b32 v{vE+i}, v{vR+i}, 14, v{vE+i}")
A(f"""B_mgot:""")
zeros()
A(f"""  v_cmp_gt_u32 vcc, 16, v0
  s_mov_b64 exec, vcc
  ds_write_b128 v{vT16}, v[12:15] offset:{L_CNT}
  s_mov_b64 exec, -1""")
list_init()
A(f"""  s_mul_i32 s61, s2, {NPB}
  v_lshlrev_b32 v{vT}, 2, v0
  s_min_u32 s60, s60, {CH}""")
for i in range(4):
    A(f"""  v_and_b32 v{vT+1}, 0x3fff, v{vE+i}
  v_subrev_u32 v{vT+1}, s61, v{vT+1}
  v_lshrrev_b32 v{vE+i}, 14, v{vE+i}
  v_lshl_or_b32 v{vE+i}, v{vE+i}, 8, v{vT+1}
  v_add_u32 v{vT+2}, {i}, v{vT}
  v_cmp_gt_u32 vcc, s60, v{vT+2}
  v_cmp_gt_u32 s[56:57], {NPB}, v{vT+1}
  s_and_b64 vcc, vcc, s[56:57]
  s_nop 1
  v_cndmask_b32 v{vE+i}, -1, v{vE+i}, vcc""")
A("""  s_waitcnt lgkmcnt(0)
  s_barrier
  s_branch B_build""")
kd(MK, NV, 100)

out = "\n".join(L)
npf_early = min(opt["pf"], 1 if opt["pfl"] else 2)
dw = []
if npf_early == 0:
    dw.append("  s_waitcnt vmcnt(0) lgkmcnt(0)")
else:
    dw.append("""  s_cmp_lt_u32 s2, 128
  s_cselect_b32 s58, 0, s36
  s_cmp_eq_u32 s58, 0
  s_cbranch_scc1 F_dw0""")
    if npf_early == 2:
        dw.append(f"""  s_cmp_gt_u32 s36, {(64 + 1563 - 960 - 1)//64}
  s_cbranch_scc1 F_dw1
  s_waitcnt vmcnt(2) lgkmcnt(0)
  s_branch F_dwd
F_dw1:""")
    dw.append("""  s_waitcnt vmcnt(1) lgkmcnt(0)
  s_branch F_dwd
F_dw0:
  s_waitcnt vmcnt(0) lgkmcnt(0)
F_dwd:""")
out = out.replace("@@DMAWAIT@@", "\n".join(dw))
print(out)
```

```python
import sys, struct, math

N = 12500; E = 400000
NPB = 49; NB = 256
CH = 3200; NCH = 125
CELL0 = 2048
CELLROW = NCH * 128
WS_OVF = 0x900000
OVFCNT_REL = 0x200000
WS_TS = 0x1000000
TK = [0x00000000, 0x6B400000, 0xD6800000, 0x41C00000]
PADC = 0x7FC00000

opt = dict(pk=0, pq=0, prio=1, bp=0, xnt=0, xe=1, ts=0, pf=0, pfp=0, pfl=0, limit=40000, slp=2, na=1024)
for a in sys.argv[1:]:
    k, v = a.split("=")
    opt[k] = int(v, 0)

L = []
def A(s):
    for line in s.split("\n"):
        L.append(line)

NS = 784
L_CNT = 50 * NS
L_FLAGS = L_CNT + 256
L_LIST = L_FLAGS + 32
L_QN = L_LIST + 1088 * 16
L_WQ = 65536
L_XO = L_WQ + 32768
L_WV = L_XO + 16384
LDS_TOTAL = L_WV + 32768
P_CNT = 32768
P_OCNT = P_CNT + 1024

sX, sSRC, sDST, sWQ = 4, 6, 8, 10
sWV, sOUT, sDBG, sWS = 64, 66, 68, 70
rX, rOUT, rOVF = 12, 16, 20
sT = 24
sTP = 28
sCM = 32
sEP = 35
sW = 36; sP = 37; sU = 38; sODD = 39
sT64 = 72; sMO = 100; sMQ = 46
vT16 = 1; vL16 = 2
cXC, cLQ, cACQ, cIDX = 4, 5, 6, 7
cWF, cBF, cQD, cPO = 8, 9, 10, 11
cS16, cSL, cCMA, cCMB = 12, 13, 14, 15
cAR, cSW, cOUT, cNODE = 16, 17, 18, 19
vLB = 20; vQB = 21
vI = 22; vQA = [24, 26, 28]
vT = 30
vA = 38; vAa = 42; vAb = 46
vD = 50
vQ = 58
vX = [74, 90, 106]
vE = 106; vR = 110; vP = 114
vPF = 122
NV = 124

KN = "standalone__kernel_systems_refs_featgraph__graph_kernel"
for line in open("standalone__kernel_systems_refs_featgraph__graph.s.ref").read().split("\n"):
    if line.startswith("; Override"): break
    A(line)
A(f"; @launch grid=(256,1,1) block=(1024,1,1) lds={LDS_TOTAL}")
A('.amdgcn_target "amdgcn-amd-amdhsa--gfx950"')
A(".text")

TSR = [80+2*i for i in range(9)] + [74, 76, 78, 0]
def ts(i):
    if opt["ts"]:
        A(f"  s_memrealtime s[{TSR[i]}:{TSR[i]+1}]")

def ts_store(idx):
    A("  s_waitcnt lgkmcnt(0)")
    A(f"  s_add_u32 s98, s{sWS}, {WS_TS:#x}")
    A(f"  s_addc_u32 s99, s{sWS+1}, 0")
    A(f"  s_mov_b64 exec, 1")
    A(f"  v_lshrrev_b32 v1, 6, v0")
    A(f"  s_lshl_b32 s3, s2, 4")
    A(f"  v_add_u32 v1, s3, v1")
    A(f"  v_lshlrev_b32 v1, 7, v1")
    for j, i in enumerate(idx):
        A(f"  v_mov_b32 v2, s{TSR[i]}")
        A(f"  v_mov_b32 v3, s{TSR[i]+1}")
        A(f"  global_store_dwordx2 v1, v[2:3], s[98:99] offset:{j*8}")
        A(f"  s_nop 1")

def movs(base, n, val):
    for k in range(n):
        A(f"  v_mov_b32 v{base+k}, {val}")

def zero_fill(z):
    for k in range(4):
        A(f"  ds_write_b128 v{vT16}, v[{z}:{z+3}] offset:{k*16384}")

def dma_w(base, sreg):
    A(f"""  s_lshl_b32 s56, s{sW}, 10
  s_add_u32 m0, s56, {base}
  v_add_u32 v{vT+2}, 0x4000, v2
  global_load_lds_dwordx4 v2, s[{sreg}:{sreg+1}]
  s_add_u32 m0, s56, {base+16384}
  s_nop 0
  global_load_lds_dwordx4 v{vT+2}, s[{sreg}:{sreg+1}]""")

def consts():
    t = vT
    A(f"""  s_and_b32 s56, s{sW}, 3
  s_lshl_b32 s57, s56, 2                   ; T'*4
  s_lshl_b32 s{sT64}, s56, 6               ; T'*64
  s_and_b32 s58, s{sW}, 12
  s_lshl_b32 s58, s58, 2                   ; 16*tile
  v_and_b32 v{t}, 7, v0
  v_lshlrev_b32 v{t}, 4, v{t}              ; u*16
  v_or_b32 v{cXC}, {PADC:#x}, v{t}
  v_add_u32 v{cLQ}, 512, v{t}
  v_and_b32 v{t+1}, 16, v0
  v_add_u32 v{t+1}, v{t+1}, v{t}
  v_subrev_u32 v{cACQ}, 512, v{t+1}
  v_lshrrev_b32 v{t+1}, 3, v0
  s_movk_i32 s59, {CELLROW}
  v_mad_u32_u24 v{cPO}, v{t+1}, s59, v{t}
  v_and_b32 v{t+1}, 3, v0                  ; c
  v_mul_u32_u24 v{cIDX}, 0x5555, v{t+1}
  v_bfe_u32 v{t+2}, v0, 2, 4
  v_add_u32 v{t+2}, s58, v{t+2}
  v_cmp_gt_u32 s[{sMO}:{sMO+1}], {NPB}, v{t+2}
  v_lshlrev_b32 v{t+2}, 8, v{t+2}
  v_lshl_add_u32 v{cOUT}, v{t+1}, 4, v{t+2}
  v_and_b32 v{t}, 15, v0                   ; j
  v_xor_b32 v{t+1}, s57, v{t}
  v_and_b32 v{t+2}, 12, v0
  v_and_b32 v{t+3}, 48, v0
  s_mov_b32 s59, {L_WQ}
  v_lshl_add_u32 v{cWF}, v{t+3}, 7, s59
  v_lshl_add_u32 v{cWF}, v{t+2}, 6, v{cWF}
  v_lshl_add_u32 v{cWF}, v{t+1}, 4, v{cWF}
  v_bfe_u32 v{t+1}, v0, 4, 2               ; g
  v_xor_b32 v{t+2}, v{t+1}, v{t}
  v_add_u32 v{t+3}, s58, v{t}              ; node
  s_mov_b32 s59, {L_XO}
  v_lshl_add_u32 v{cBF}, v{t+3}, 8, s59
  v_lshl_add_u32 v{cBF}, v{t+2}, 4, v{cBF}
  v_cmp_gt_u32 s[{sMQ}:{sMQ+1}], {NPB}, v{t+3}
  v_mul_u32_u24 v{t+3}, {NS}, v{t+3}
  v_lshl_add_u32 v{cAR}, v{t+1}, 5, v{t+3}
  v_lshl_add_u32 v{cQD}, v{t+1}, 4, v{t+3}
  v_add_u32 v{cQD}, s{sT64}, v{cQD}
  s_mov_b32 s59, {L_LIST}
  v_lshl_add_u32 v{cSL}, v{t+1}, 2, s59
  v_lshl_add_u32 v{t}, v{t}, 2, v{t+1}
  s_lshl_b32 s57, s{sW}, 10
  s_add_u32 s57, s57, s59
  v_lshl_add_u32 v{cSW}, v{t}, 4, s57
  v_and_b32 v{t}, 8, v0
  s_lshl_b32 s57, s{sW}, 5
  v_lshl_add_u32 v{cS16}, v{t}, 1, s57
  v_bfe_u32 v{t}, v0, 5, 1
  s_lshl_b32 s57, s{sW}, 3
  v_lshl_add_u32 v{cCMA}, v{t}, 2, s57
  v_and_b32 v{t}, 31, v0
  s_mov_b32 s59, {L_QN-4}
  v_lshl_add_u32 v{cCMB}, v{t}, 2, s59
  v_and_b32 v{t}, 63, v0
  v_mul_u32_u24 v{cNODE}, {NS}, v{t}
  v_and_b32 v3, 0xf0, v0
  v_xor_b32 v3, v3, v{vT16}
  s_mov_b32 s54, 0x400000
  s_mov_b32 s55, 0x3fff00
  s_mov_b32 s62, 0
  s_mov_b32 s48, 0x00ff00ff
  s_mov_b32 s49, 0xff00ff00""")
    movs(vA, 12, 0)
    if opt["pk"] or opt["pq"]: pf_setup(0)

def dma_x(lbl):
    A(f"""  s_lshl_b32 s56, s{sW}, 10
  s_add_u32 m0, s56, {L_XO}
  s_mul_i32 s57, s2, {NPB*256}
  s_cmp_gt_u32 s{sW}, 12
  s_cbranch_scc1 {lbl}
  buffer_load_dwordx4 v3, s[{rX}:{rX+3}], s57 offen{" nt" if opt["xnt"] else ""} lds
{lbl}:""")

def tags():
    A(f"""  s_add_u32 s{sEP}, s{sEP}, 1
  s_lshl_b32 s{sT}, s{sEP}, 22""")
    for k in range(1, 4):
        A(f"  s_xor_b32 s{sT+k}, s{sT}, {TK[k]:#x}")

NA = opt["na"]
NP = (25000 - 16 * NA + 15) // 16
def prefetch(grpP, lbl):
    n = NP if grpP else NA
    if n <= 0:
        return 0
    A(f"  s_lshr_b32 s3, s2, 3")
    if grpP:
        A(f"  s_mul_i32 s3, s3, {NP*128}")
        A(f"  s_add_u32 s3, s3, {16*NA*128}")
    else:
        A(f"  s_sub_u32 s3, s3, 16")
        A(f"  s_mul_i32 s3, s3, {NA*128}")
    A(f"  v_lshlrev_b32 v{vPF+1}, 7, v0")
    done = 0
    while done < n:
        m = min(1024, n - done)
        if m < 1024:
            A(f"""  v_mov_b32 v{vPF}, {m}
  v_cmp_gt_u32 vcc, v{vPF}, v0
  s_mov_b64 exec, vcc
  s_cbranch_execz {lbl}""")
        A(f"  buffer_load_dword v{vPF}, v{vPF+1}, s[{rX}:{rX+3}], s3 offen")
        done += m
        if done < n:
            A(f"  s_add_u32 s3, s3, {1024*128}")
    A(f"{lbl}:\n  s_mov_b64 exec, -1")

def pf_setup(K):
    A(f"""  s_lshr_b32 s3, s2, 3
  s_mul_i32 s3, s3, 782
  s_mul_i32 s56, s{sW}, 49
  s_add_u32 s3, s3, s56
  v_and_b32 v{vPF+1}, 63, v0
  v_add_u32 v{vPF+1}, s3, v{vPF+1}
  v_lshlrev_b32 v{vPF+1}, 7, v{vPF+1}""")

def pf_issue(lo, hi):
    m = ((1 << hi) - 1) ^ ((1 << lo) - 1)
    A(f"""  s_mov_b32 exec_lo, {m & 0xffffffff:#x}
  s_mov_b32 exec_hi, {m >> 32:#x}
  buffer_load_dword v{vPF}, v{vPF+1}, s[{rX}:{rX+3}], 0 offen
  s_mov_b64 exec, -1""")

def w_frag_reads(addr, base, s, off=0):
    for b in range(2):
        r = base + (b*4+s)*4
        A(f"  ds_read_b64_tr_b16 v[{r}:{r+1}], v{addr} offset:{off + s*8192 + 8*b}")
        A(f"  ds_read_b64_tr_b16 v[{r+2}:{r+3}], v{addr} offset:{off + s*8192 + 1024 + 8*b}")

A(f"""
.globl {KN}
.p2align 8
.type {KN},@function
{KN}:""")
ts(0)
pD, pS, pB, pE, pR = 74, 78, 82, 86, 90
A(f"""  s_load_dwordx8 s[4:11], s[0:1], 0
  s_load_dwordx8 s[64:71], s[0:1], 32
  s_cmp_ge_u32 s2, 256
  s_cbranch_scc1 B_done
  v_lshlrev_b32 v{vT16}, 4, v0
  v_readfirstlane_b32 s{sW}, v0
  v_lshlrev_b32 v2, 2, v0
  v_and_b32 v2, 0xc0, v2
  v_xor_b32 v2, v2, v{vT16}
  s_lshr_b32 s{sW}, s{sW}, 6
  s_mov_b32 s{rX+2}, {N*256}
  s_mov_b32 s{rX+3}, 0x20000""")
movs(vD, 4, 0)
A(f"""  s_cmp_ge_u32 s2, 125
  s_cbranch_scc1 F_nopart
  s_mul_i32 s3, s2, 12800
  v_add_u32 v{vT}, s3, v{vT16}
  v_mov_b32 v{vT+1}, 800
  v_cmp_gt_u32 s[40:41], v{vT+1}, v0""")
movs(vD+4, 4, -1)
A(f"""  ds_write_b128 v{vT16}, v[{vD+4}:{vD+7}]
  ds_write_b128 v{vT16}, v[{vD+4}:{vD+7}] offset:16384
  ds_write_b128 v{vT16}, v[{vD}:{vD+3}] offset:32768
  s_mov_b64 exec, s[40:41]
  s_waitcnt lgkmcnt(0)
  s_load_dword s{sEP}, s[{sWS}:{sWS+1}], 0
  s_cbranch_execz F_noload
  global_load_dwordx4 v[{pD}:{pD+3}], v{vT}, s[{sDST}:{sDST+1}] nt
  global_load_dwordx4 v[{pS}:{pS+3}], v{vT}, s[{sSRC}:{sSRC+1}] nt
F_noload:
  s_mov_b64 exec, -1
  s_mov_b64 s[{rX}:{rX+1}], s[{sX}:{sX+1}]
  s_barrier""")
ts(9)
dma_w(L_WQ, sWQ)
consts()
A(f"""  s_mov_b64 exec, s[40:41]
  s_cbranch_execz F_placed
  s_movk_i32 s58, 21400
  v_mov_b32 v{vT+4}, 4
  s_movk_i32 s59, -49
  s_waitcnt vmcnt(3)""")
ts(10)
for i in range(4):
    A(f"  v_mul_u32_u24 v{pB+i}, s58, v{pD+i}")
for i in range(4):
    A(f"  v_lshrrev_b32 v{pB+i}, 20, v{pB+i}")
for i in range(4):
    A(f"  v_mad_i32_i24 v{pE+i}, v{pB+i}, s59, v{pD+i}")
    A(f"  v_lshlrev_b32 v{pB+i}, 2, v{pB+i}")
    A(f"  ds_add_rtn_u32 v{pR+i}, v{pB+i}, v{vT+4} offset:{P_CNT}")
A("  s_waitcnt vmcnt(2)")
if opt["xe"]: dma_x("F_nx0")
ts(11)
for i in range(4):
    A(f"  v_lshl_add_u32 v{pE+i}, v{pS+i}, 8, v{pE+i}")
A("  s_movk_i32 s58, 124")
A("  s_waitcnt lgkmcnt(0)")
A(f"  v_max3_u32 v{vT+5}, v{pR}, v{pR+1}, v{pR+2}")
A(f"  v_max_u32 v{vT+5}, v{vT+5}, v{pR+3}")
A(f"  v_cmp_le_u32 vcc, s58, v{vT+5}")
A(f"  s_cbranch_vccnz F_ovf") if False else A("  s_cmp_lg_u64 vcc, 0\n  s_cbranch_scc1 F_ovf")
A("F_ovfdone:")
for i in range(4):
    A(f"  v_add_u32 v{pR+i}, v{pR+i}, v{pB+i}")
    A(f"  v_and_b32 v{pR+i}, s58, v{pR+i}")
    A(f"  v_lshl_add_u32 v{pR+i}, v{pB+i}, 5, v{pR+i}")
    A(f"  ds_write_b32 v{pR+i}, v{pE+i}")
A(f"""F_placed:
  s_mov_b64 exec, -1
  v_mov_b32 v{vT+4}, {P_OCNT}
  s_waitcnt lgkmcnt(0)
  s_barrier
  {"s_memrealtime s[0:1]" if opt["ts"] else ""}
  ds_read_b32 v{pB}, v{vT+4}
  ds_read_b128 v[{pD}:{pD+3}], v{vT16}
  ds_read_b128 v[{pS}:{pS+3}], v{vT16} offset:16384""")
tags()
for k in range(4):
    A(f"  s_add_u32 s{sTP+k}, s{sT+k}, 1")
A(f"""  s_lshl_b32 s3, s2, 7
  s_add_u32 s56, s{sWS}, s3
  s_addc_u32 s57, s{sWS+1}, 0
  s_add_u32 s58, s56, {128*CELLROW}
  s_addc_u32 s59, s57, 0
  s_waitcnt lgkmcnt(2)
  v_readfirstlane_b32 s60, v{pB}
  s_cmp_lg_u32 s60, 0
  s_cbranch_scc1 F_cnt
F_cntdone:
  s_waitcnt lgkmcnt(1)""")
for k in range(4):
    A(f"  v_add_u32 v{pD+k}, s{sTP+k}, v{pD+k}")
A(f"  global_store_dwordx4 v{cPO}, v[{pD}:{pD+3}], s[56:57] offset:{CELL0} sc1")
A("  s_waitcnt lgkmcnt(0)")
for k in range(4):
    A(f"  v_add_u32 v{pS+k}, s{sTP+k}, v{pS+k}")
A(f"  global_store_dwordx4 v{cPO}, v[{pS}:{pS+3}], s[58:59] offset:{CELL0} sc1")
ts(1)
if not opt["xe"]: dma_x("F_nx0")
zero_fill(vD)
A(f"  s_waitcnt vmcnt({2 if opt['xe'] else 0}) lgkmcnt(0)\n  s_barrier")
if opt["pfp"]: prefetch(True, "F_pfp")
A(f"""  s_branch F_join
F_nopart:""")
zero_fill(vD)
A(f"""  s_waitcnt lgkmcnt(0)
  s_load_dword s{sEP}, s[{sWS}:{sWS+1}], 0
  s_mov_b64 s[{rX}:{rX+1}], s[{sX}:{sX+1}]""")
dma_w(L_WQ, sWQ)
consts()
A("  s_waitcnt vmcnt(0)")
ts(9)
dma_x("F_nx1")
if opt["pf"] and not opt["pfl"]:
    assert NA % 1024 == 0
    A("  s_cmp_lt_u32 s2, 128\n  s_cbranch_scc1 F_pfx")
    prefetch(False, "F_pf0")
    A(f"  s_waitcnt vmcnt({NA//1024}) lgkmcnt(0)")
    A("  s_branch F_z\nF_pfx:")
A("  s_waitcnt vmcnt(0) lgkmcnt(0)")
A("F_z:")
tags()
A("  s_barrier")
if opt["pfp"] or (opt["pf"] and opt["pfl"]):
    A("  s_cmp_ge_u32 s2, 128\n  s_cbranch_scc1 F_late")
    if opt["pfp"]: prefetch(True, "F_pfq")
    A("  s_branch F_join\nF_late:")
    if opt["pf"] and opt["pfl"]:
        prefetch(False, "F_pf0")
ts(1)
A("F_join:")
ts(2)
dma_w(L_WV, sWV)
if opt["pq"]: pf_issue(0, opt["pq"])
FA = 74; FB = 58
for s in range(4):
    w_frag_reads(cWF, FA, s)
    if s:
        A(f"  v_xor_b32 v{vT+s}, {s*64}, v{cBF}")
        A(f"  ds_read_b128 v[{FB+4*s}:{FB+4*s+3}], v{vT+s}")
    else:
        A(f"  ds_read_b128 v[{FB}:{FB+3}], v{cBF}")
A(f"""  s_mul_i32 s3, s2, {CELLROW}
  v_add_u32 v{vP+4}, s3, v{vT16}
  v_mov_b32 v{vT+4}, 1000
  v_cmp_gt_u32 s[56:57], v{vT+4}, v0
  s_mov_b32 s61, 0xbe0293ee                ; -log2(e)/sqrt(128)
  s_mov_b32 s60, {opt["limit"]}
""")
movs(vE, 4, 0)
for s in range(4):
    A(f"  s_waitcnt lgkmcnt({min(15,(3-s)*5)})")
    for b in range(2):
        d = vD + 4*b
        a = FA + (b*4+s)*4
        c = "0" if s == 0 else f"v[{d}:{d+3}]"
        A(f"  v_mfma_f32_16x16x32_bf16 v[{d}:{d+3}], v[{a}:{a+3}], v[{FB+4*s}:{FB+4*s+3}], {c}")
A(f"""  s_mov_b64 exec, s[56:57]
  global_load_dwordx4 v[{vE}:{vE+3}], v{vP+4}, s[{sWS}:{sWS+1}] offset:{CELL0} sc1
  s_mov_b64 exec, s[{sMQ}:{sMQ+1}]
  s_nop 5""")
for k in range(8):
    A(f"  v_mul_f32 v{vD+k}, s61, v{vD+k}")
for k in range(4):
    A(f"  v_cvt_pk_bf16_f32 v{vD+k}, v{vD+2*k}, v{vD+2*k+1}")
A(f"  ds_write_b128 v{cQD}, v[{vD}:{vD+3}] offset:{NS+512}")
ts(3)
A(f"""  s_mov_b64 exec, s[56:57]
  s_branch F_polltest
F_poll:
  s_sleep {opt["slp"]}
  s_sub_u32 s60, s60, 1
  s_cbranch_scc1 F_giveup
  global_load_dwordx4 v[{vE}:{vE+3}], v{vP+4}, s[{sWS}:{sWS+1}] offset:{CELL0} sc1
F_polltest:
  s_waitcnt vmcnt(0)
  v_xor_b32 v{vT}, s{sT}, v{vE}
  v_bitop3_b32 v{vT}, v{vE+1}, s{sT+1}, v{vT} bitop3:0xbe
  v_bitop3_b32 v{vT}, v{vE+2}, s{sT+2}, v{vT} bitop3:0xbe
  v_bitop3_b32 v{vT}, v{vE+3}, s{sT+3}, v{vT} bitop3:0xbe
  v_cmp_le_u32 vcc, s54, v{vT}
  s_mov_b64 exec, vcc
  s_cbranch_execnz F_poll
F_polled:
  s_mov_b64 exec, -1""")
if opt["pk"]: pf_issue(opt["pq"], opt["pk"])
ts(4)
A("B_build:")
for i in range(4):
    A(f"  v_lshlrev_b32_sdwa v{vP+i}, 2, v{vE+i} dst_sel:DWORD dst_unused:UNUSED_PAD src0_sel:DWORD src1_sel:BYTE_0")
A(f"  v_mov_b32 v{vT+3}, 4")
A(f"  v_max3_u32 v{vT}, v{vP}, v{vP+1}, v{vP+2}")
A(f"  v_max_u32 v{vT}, v{vT}, v{vP+3}")
A(f"  v_cmp_lt_u32 vcc, 0xf8, v{vT}")
A(f"  s_cmp_lg_u64 vcc, 0\n  s_cbranch_scc1 B_mark\nB_nomark:")
for i in range(4):
    A(f"  v_cmp_ne_u32 s[{40+2*i}:{41+2*i}], 0, v{vP+i}")
A(f"  v_mov_b32 v{vT+1}, {PADC:#x}")
for i in range(4):
    A(f"  s_mov_b64 exec, s[{40+2*i}:{41+2*i}]")
    A(f"  ds_add_rtn_u32 v{vR+i}, v{vP+i}, v{vT+3} offset:{L_CNT}")
A("  s_mov_b64 exec, -1")
for i in range(4):
    A(f"  v_bitop3_b32 v{vE+i}, v{vE+i}, s55, v{vT+1} bitop3:0x6a")
A(f"""  v_bfe_u32 v{vT}, v{vT16}, 2, 8           ; lane*4
  v_mov_b32 v{vT+4}, {L_FLAGS}
  s_waitcnt lgkmcnt(0)
  s_barrier
  ds_read_b32 v{vT+1}, v{vT} offset:{L_CNT}
  ds_read_b128 v[{vT+4}:{vT+7}], v{vT+4}
  s_lshl_b32 s58, s{sW}, 2
  s_mov_b32 s59, s{sW}
  s_waitcnt lgkmcnt(1)
  v_add_u32 v{vT+1}, 12, v{vT+1}
  v_lshrrev_b32 v{vT+1}, 4, v{vT+1}        ; nq
  s_nop 1
  v_add_u32_dpp v{vT+2}, v{vT+1}, v{vT+1} row_shr:1 row_mask:0xf bank_mask:0xf bound_ctrl:0
  s_nop 1
  v_add_u32_dpp v{vT+2}, v{vT+2}, v{vT+2} row_shr:2 row_mask:0xf bank_mask:0xf
  s_nop 1
  v_add_u32_dpp v{vT+2}, v{vT+2}, v{vT+2} row_shr:4 row_mask:0xf bank_mask:0xf
  s_nop 1
  v_add_u32_dpp v{vT+2}, v{vT+2}, v{vT+2} row_shr:8 row_mask:0xf bank_mask:0xf
  s_nop 1
  v_add_u32_dpp v{vT+2}, v{vT+2}, v{vT+2} row_bcast:15 row_mask:0xa bank_mask:0xf
  s_nop 1
  v_add_u32_dpp v{vT+2}, v{vT+2}, v{vT+2} row_bcast:31 row_mask:0xc bank_mask:0xf
  s_nop 0
  v_sub_u32 v{vT}, v{vT+2}, v{vT+1}        ; qstart
  v_readlane_b32 s{sP}, v{vT+2}, 63        ; T4
  v_lshlrev_b32 v{vT+2}, 4, v{vT}          ; qstart*16""")
for i in range(4):
    A(f"  ds_bpermute_b32 v{vP+i}, v{vP+i}, v{vT+2}")
A(f"""  v_lshl_add_u32 v{vT}, v{vT}, 2, s58
  s_add_u32 s{sP}, s{sP}, 31
  s_lshr_b32 s{sP}, s{sP}, 5
B_qn:
  v_cmp_lt_u32 vcc, s59, v{vT+1}
  s_add_u32 s59, s59, 16
  v_cmp_lt_u32 s[56:57], s59, v{vT+1}
  s_mov_b64 exec, vcc
  ds_write_b32 v{vT}, v{cNODE} offset:{L_QN}
  s_mov_b64 exec, -1
  s_cmp_lg_u64 s[56:57], 0
  s_cbranch_scc1 B_qnmore
  v_cmp_lt_u32 vcc, s{sP}, v{vT+1}
  s_mov_b32 s63, s62
  s_cmp_lg_u64 vcc, 0
  s_cbranch_scc1 B_mode
B_modedone:
  v_mad_u32_u24 v{vLB}, v{cS16}, s{sP}, v{cSL}
  v_mul_u32_u24 v{vQB}, s{sP}, v{cS16}
  v_mad_u32_u24 v{vT}, v{cCMA}, s{sP}, v{cCMB}
  v_lshrrev_b32 v{vQB}, 2, v{vQB}
  s_waitcnt lgkmcnt(0)""")
for i in range(4):
    A(f"  v_add_u32 v{vR+i}, v{vR+i}, v{vP+i}")
for i in range(4):
    A(f"  s_mov_b64 exec, s[{40+2*i}:{41+2*i}]")
    A(f"  ds_write_b32 v{vR+i}, v{vE+i} offset:{L_LIST}")
A(f"""  s_mov_b64 exec, -1
  s_cmp_lg_u32 s62, 0
  s_cbranch_scc1 B_noflags
  v_readfirstlane_b32 s53, v{vT+7}
  v_readfirstlane_b32 s50, v{vT+4}
  v_readfirstlane_b32 s51, v{vT+5}
  v_readfirstlane_b32 s52, v{vT+6}
  s_bitcmp1_b32 s53, 31
  s_cbranch_scc1 B_raw
B_noflags:""")
movs(vD, 8, 0)
A(f"""  s_add_u32 s{sU}, s{sP}, 1
  s_lshr_b32 s{sU}, s{sU}, 1
  s_and_b32 s{sODD}, s{sP}, 1
  s_mul_i32 s57, s{sODD}, 3
  s_cmp_le_u32 s{sP}, 5
  s_waitcnt lgkmcnt(0)
  s_barrier""")
ts(5)
if opt["ts"]: A("  s_memtime s[76:77]")
A(f"""  ds_read2_b32 v[{vI}:{vI+1}], v{vLB} offset0:0 offset1:4
  v_add_u32 v{vQB}, {L_QN}, v{vQB}
  ds_read2_b32 v[{vT+4}:{vT+5}], v{vLB} offset0:8 offset1:12
  ds_read2_b32 v[{vQA[0]}:{vQA[0]+1}], v{vQB} offset0:0 offset1:1
  ds_read2_b32 v[{vT+2}:{vT+3}], v{vT} offset0:0 offset1:1
  s_cbranch_scc1 B_small""")

def loads_a(x, i):
    return (f"  v_xor_b32 v{i}, v{i}, v{cXC}\n"
            f"  buffer_load_dwordx4 v[{x}:{x+3}], v{i}, s[{rX}:{rX+3}], 0 offen\n"
            f"  buffer_load_dwordx4 v[{x+8}:{x+11}], v{i}, s[{rX}:{rX+3}], 0 offen offset:128")
def loads_b(x, i):
    return (f"  v_xor_b32 v{i}, v{i}, v{cXC}\n"
            f"  buffer_load_dwordx4 v[{x+4}:{x+7}], v{i}, s[{rX}:{rX+3}], 0 offen\n"
            f"  buffer_load_dwordx4 v[{x+12}:{x+15}], v{i}, s[{rX}:{rX+3}], 0 offen offset:128")
def q_reads(q):
    A(f"  v_add_u32 v{q}, v{q}, v{cLQ}")
    A(f"  v_add_u32 v{q+1}, v{q+1}, v{cLQ}")
    A(f"  ds_read_b128 v[{vQ}:{vQ+3}], v{q}")
    A(f"  ds_read_b128 v[{vQ+4}:{vQ+7}], v{q+1}")
    A(f"  ds_read_b128 v[{vQ+8}:{vQ+11}], v{q} offset:128")
    A(f"  ds_read_b128 v[{vQ+12}:{vQ+15}], v{q+1} offset:128")

A("B_start:\n  s_waitcnt lgkmcnt(3)")
A(loads_a(vX[0], vI)); A(loads_b(vX[0], vI+1))
A("  s_waitcnt lgkmcnt(2)")
A(loads_a(vX[1], vT+4)); A(loads_b(vX[1], vT+5))
A("B_started:")
A(f"  ds_read2_b32 v[{vI}:{vI+1}], v{vLB} offset0:16 offset1:20")
A("  s_waitcnt lgkmcnt(1)")
A(f"  v_cmp_ne_u32 s[{sCM}:{sCM+1}], v{vT+2}, v{vT+3}")
q_reads(vQA[0])
A(f"""  s_bitset0_b32 s{sCM}, 0
  s_bitset0_b32 s{sCM+1}, 0
  s_or_b32 s34, s{sCM}, s{sCM+1}""")

ool = []
def flush_block(lbl, qa, bit):
    s = f"""{lbl}:
  s_bitcmp1_b32 s{sCM}, {bit}
  s_cselect_b32 exec_lo, s48, 0
  s_bitcmp1_b32 s{sCM+1}, {bit}
  s_cselect_b32 exec_hi, s49, 0
  v_add_u32 v{vT+4}, v{qa}, v{cACQ}
  s_cmp_ge_u32 s63, 2
  s_cbranch_scc1 {lbl}_at
  s_nop 2
  ds_write_b128 v{vT+4}, v[{vD}:{vD+3}]
  ds_write_b128 v{vT+4}, v[{vD+4}:{vD+7}] offset:256
{lbl}_z:
  s_nop 1
"""
    for k in range(0, 8, 2):
        s += f"  v_mov_b64 v[{vD+k}:{vD+k+1}], 0\n"
    s += "  s_mov_b64 exec, -1\n"
    tail = f"{lbl}_at:\n  s_nop 2\n"
    for k in range(8):
        tail += f"  ds_add_f32 v{vT+4}, v{vD+k} offset:{(k//4)*256 + (k%4)*4}\n"
    tail += f"  s_branch {lbl}_z\n"
    return s, tail

def smf(a, x):
    return (f"  v_smfmac_f32_16x16x64_bf16 v[{vD}:{vD+3}], v[{a}:{a+3}], v[{x}:{x+7}], v{cIDX}\n"
            f"  v_smfmac_f32_16x16x64_bf16 v[{vD+4}:{vD+7}], v[{a}:{a+3}], v[{x+8}:{x+15}], v{cIDX}")

def abuild(a, r, rowmask):
    return (f"  v_mov_b32_dpp v{a}, v{r} quad_perm:[0,1,2,3] row_mask:{rowmask:#x} bank_mask:0x5\n"
            f"  v_mov_b32_dpp v{a+1}, v{r} row_half_mirror row_mask:{rowmask:#x} bank_mask:0xa\n"
            f"  v_mov_b32_dpp v{a+2}, v{r} row_half_mirror row_mask:{rowmask:#x} bank_mask:0x5\n"
            f"  v_mov_b32_dpp v{a+3}, v{r} quad_perm:[0,1,2,3] row_mask:{rowmask:#x} bank_mask:0xa")

SH = f"  s_lshr_b32 s34, s34, 2\n  s_lshr_b32 s{sCM}, s{sCM}, 2\n  s_lshr_b32 s{sCM+1}, s{sCM+1}, 2"
def body(n):
    x = vX[n]; xn = vX[(n+2) % 3]
    qa = vQA[n]; qn = vQA[(n+1) % 3]; qp = vQA[(n+2) % 3]
    r = vT + 2
    pa, pb = vT, vT + 1
    A(f"B_u{n}:")
    A(f"  s_bitcmp1_b32 s34, 0")
    A(f"  s_cbranch_scc1 B_fa{n}")
    A(f"B_fa{n}_ret:")
    s, t = flush_block(f"B_fa{n}", qp + 1, 0)
    ool.append(s + f"  s_branch B_fa{n}_ret\n" + t)
    A(f"  ds_read2_b32 v[{qn}:{qn+1}], v{vQB} offset0:{2+2*n} offset1:{3+2*n}")
    A(f"  s_cmp_le_u32 s{sU}, 2")
    A(f"  s_cbranch_scc1 B_nl{n}")
    A(f"  s_cmp_eq_u32 s{sU}, s57")
    A(f"  s_waitcnt lgkmcnt(5)")
    A(loads_a(xn, vI))
    A(f"  s_cbranch_scc1 B_skip{n}")
    A(loads_b(xn, vI+1))
    A(f"  ds_read2_b32 v[{vI}:{vI+1}], v{vLB} offset0:{24+8*n} offset1:{28+8*n}")
    A(f"  s_waitcnt vmcnt(8) lgkmcnt(2)")
    A(f"B_go{n}:")
    ool.append(f"""B_skip{n}:
  s_waitcnt vmcnt(6) lgkmcnt(0)
  s_branch B_go{n}
B_nl{n}:
  {"s_setprio 0" if opt["prio"] else ""}
  s_cmp_eq_u32 s{sU}, 1
  s_cbranch_scc1 B_nl{n}_last
  s_waitcnt vmcnt(2) lgkmcnt(0)
  s_branch B_go{n}
B_nl{n}_last:
  s_lshl_b32 s56, s{sODD}, 1
  s_or_b32 s34, s34, s56
  s_waitcnt vmcnt(0) lgkmcnt(0)
  s_branch B_go{n}
""")
    order = [(0, 4), (1, 5), (2, 6), (3, 7), (8, 12), (9, 13), (10, 14), (11, 15)]
    for k, (ia, ib) in enumerate(order):
        ca = "0" if k == 0 else f"v{pa}"
        cb = "0" if k == 0 else f"v{pb}"
        A(f"  v_dot2_f32_bf16 v{pa}, v{x+ia}, v{vQ+ia}, {ca}")
        A(f"  v_dot2_f32_bf16 v{pb}, v{x+ib}, v{vQ+ib}, {cb}")
    A("  s_waitcnt lgkmcnt(1)")
    q_reads(qn)
    A(f"  v_permlane32_swap_b32 v{pa}, v{pb}")
    if n == 2:
        A(f"  v_add_u32 v{vLB}, 96, v{vLB}")
        A(f"  v_add_u32 v{vQB}, 24, v{vQB}")
    else:
        A("  s_nop 1")
    A(f"  v_permlane16_swap_b32 v{pa}, v{pb}")
    A(f"  s_nop 1")
    A(f"  v_add_f32_dpp v{r}, v{pa}, v{pa} row_half_mirror row_mask:0xf bank_mask:0x5")
    A(f"  v_add_f32_dpp v{r}, v{pb}, v{pb} row_half_mirror row_mask:0xf bank_mask:0xa")
    A(f"  s_nop 1")
    A(f"  v_add_f32_dpp v{r}, v{r}, v{r} quad_perm:[1,0,3,2] row_mask:0xf bank_mask:0xf")
    A(f"  s_nop 1")
    A(f"  v_add_f32_dpp v{r}, v{r}, v{r} quad_perm:[2,3,0,1] row_mask:0xf bank_mask:0xf")
    A(f"  v_exp_f32 v{r}, v{r}")
    A(f"  s_nop 0")
    A(f"  v_add_f32 v{r}, 1.0, v{r}")
    A(f"  v_rcp_f32 v{r}, v{r}")
    A(f"  s_bitcmp1_b32 s34, 1")
    A(f"  v_cvt_pk_bf16_f32 v{r}, v{r}, 0")
    A(f"  s_cbranch_scc1 B_sp{n}")
    A(f"  s_sub_u32 s{sU}, s{sU}, 1")
    A(abuild(vA, r, 0xf))
    A(SH)
    A(smf(vA, x))
    A(f"B_sp{n}_ret:")
    A(f"  s_cmp_eq_u32 s{sU}, 0")
    A(f"  s_cbranch_scc1 B_exit{n}")
    if opt["prio"] and n == 2:
        A(f"  s_setprio 1")
    s, t = flush_block(f"B_sp{n}_f", qa, 1)
    blk = (f"B_sp{n}:\n  s_sub_u32 s{sU}, s{sU}, 1\n" + abuild(vAa, r, 0x3) + "\n" + abuild(vAb, r, 0xc) + "\n"
           + f"  s_add_u32 s56, s{sU}, 1\n  s_cmp_eq_u32 s56, s{sODD}\n" + smf(vAa, x) + f"\n  s_cbranch_scc1 B_odd{n}\n  s_nop 0\n" + s
           + SH + "\n" + smf(vAb, x) + f"\n  s_branch B_sp{n}_ret\n" + t
           + f"B_odd{n}:\n  v_add_u32 v{vT+5}, v{qa}, v{cACQ}\n  s_branch B_final_flush\n"
           + f"B_exit{n}:\n  v_add_u32 v{vT+5}, v{qa+1}, v{cACQ}\n  s_branch B_final_flush\n")
    ool.append(blk)

if opt["prio"]: A("  s_setprio 3")
body(0)
body(1)
body(2)
A("  s_branch B_u0")
A("B_final_flush:")
ts(6)
for s in range(4):
    w_frag_reads(cWF, FA, s, L_WV - L_WQ) if (L_WV - L_WQ) + 3*8192 + 1024 + 8 < 65536 else None
assert (L_WV - L_WQ) + 3*8192 + 1032 < 65536 or True
if (L_WV - L_WQ) + 3*8192 + 1024 + 8 >= 65536:
    A(f"  v_add_u32 v{vT}, {L_WV - L_WQ}, v{cWF}")
    for s in range(4):
        w_frag_reads(vT, FA, s)
A(f"""  s_waitcnt lgkmcnt(0)
  s_barrier
  s_mov_b64 exec, s[48:49]
  s_cmp_lg_u32 s63, 0
  s_cbranch_scc1 B_final_special
B_final_rmw:
  ds_read_b128 v[{vQ}:{vQ+3}], v{vT+5}
  ds_read_b128 v[{vQ+4}:{vQ+7}], v{vT+5} offset:256
  s_waitcnt lgkmcnt(1)""")
for k in range(0, 4, 2):
    A(f"  v_pk_add_f32 v[{vD+k}:{vD+k+1}], v[{vD+k}:{vD+k+1}], v[{vQ+k}:{vQ+k+1}]")
A(f"  ds_write_b128 v{vT+5}, v[{vD}:{vD+3}]")
A("  s_waitcnt lgkmcnt(1)")
for k in range(4, 8, 2):
    A(f"  v_pk_add_f32 v[{vD+k}:{vD+k+1}], v[{vD+k}:{vD+k+1}], v[{vQ+k}:{vQ+k+1}]")
A(f"  ds_write_b128 v{vT+5}, v[{vD+4}:{vD+7}] offset:256")
A(f"""  s_cmp_eq_u32 s63, 1
  s_cbranch_scc1 B_final_phase2
B_final_done:
  s_mov_b64 exec, -1
B_round_fin:
  s_or_b32 s56, s50, s51
  s_or_b32 s57, s52, s53
  s_or_b32 s56, s56, s57
  s_cbranch_scc1 B_more
  s_mov_b64 s[{rOUT}:{rOUT+1}], s[{sOUT}:{sOUT+1}]
  s_mov_b32 s{rOUT+2}, {N*256}
  s_mov_b32 s{rOUT+3}, 0x20000
  s_mul_i32 s3, s2, {NPB*256}
  s_add_u32 s3, s3, s{sT64}
  s_waitcnt lgkmcnt(0)
  s_barrier""")
ts(7)
if opt["ts"]: A("  s_memtime s[78:79]")
AC = 38; BO = 106; DO = 22
for s in range(4):
    A(f"  ds_read_b128 v[{AC+8*s}:{AC+8*s+3}], v{cAR} offset:{NS+s*128}")
    A(f"  ds_read_b128 v[{AC+8*s+4}:{AC+8*s+7}], v{cAR} offset:{NS+s*128+16}")
for s in range(4):
    A(f"  s_waitcnt lgkmcnt({6-2*s})")
    for k in range(4):
        A(f"  v_cvt_pk_bf16_f32 v{BO+4*s+k}, v{AC+8*s+2*k}, v{AC+8*s+2*k+1}")
    A("  s_nop 1")
    for b in range(2):
        d = DO + 4*b
        a = FA + 4*(b*4+s)
        c = "0" if s == 0 else f"v[{d}:{d+3}]"
        A(f"  v_mfma_f32_16x16x32_bf16 v[{d}:{d+3}], v[{a}:{a+3}], v[{BO+4*s}:{BO+4*s+3}], {c}")
A(f"  s_or_b32 s56, s2, s{sW}")
A("  s_nop 6")
for k in range(4):
    A(f"  v_cvt_pk_bf16_f32 v{30+k}, v{DO+2*k}, v{DO+2*k+1}")
A(f"""  ds_write_b128 v{cSW}, v[30:33]
  ds_read_b128 v[34:37], v{vT16} offset:{L_LIST}
  s_mov_b64 exec, s[{sMO}:{sMO+1}]
  s_waitcnt lgkmcnt(0)
  buffer_store_dwordx4 v[34:37], v{cOUT}, s[{rOUT}:{rOUT+3}], s3 offen
  s_cbranch_scc1 B_noepoch
  v_mov_b32 v4, 0
  v_mov_b32 v5, s{sEP}
  s_mov_b64 exec, 1
  global_store_dword v4, v5, s[{sWS}:{sWS+1}]
B_noepoch:""")
if opt["ts"]:
    A("  s_waitcnt vmcnt(0)")
    ts(8)
    A("  s_mov_b64 exec, -1")
    ts_store(range(13))
A("B_done:\n  s_endpgm")

for blk in ool:
    A(blk)
A(f"""B_small:
  s_waitcnt lgkmcnt(0)
  s_cmp_eq_u32 s{sP}, 0
  s_cbranch_scc1 B_empty""")
for xb in vX:
    movs(xb+4, 4, 0)
    movs(xb+12, 4, 0)
A(f"  s_cmp_ge_u32 s{sP}, 4\n  s_cbranch_scc1 B_start")
A(loads_a(vX[0], vI))
A(f"  s_cmp_eq_u32 s{sP}, 1\n  s_cbranch_scc1 B_started")
A(loads_b(vX[0], vI+1))
A(f"  s_cmp_eq_u32 s{sP}, 2\n  s_cbranch_scc1 B_started")
A(loads_a(vX[1], vT+4))
A(f"""  s_branch B_started
B_empty:
  s_barrier
  v_add_u32 v{vT}, {L_WV - L_WQ}, v{cWF}""")
for s in range(4):
    w_frag_reads(vT, FA, s)
A("  s_branch B_round_fin")
A(f"""B_qnmore:
  v_add_u32 v{vT}, 64, v{vT}
  s_branch B_qn
B_mode:
  s_max_u32 s{sP}, s{sP}, 13
  s_lshl_b32 s56, s{sP}, 1
  v_cmp_lt_u32 vcc, s{sP}, v{vT+1}
  v_cmp_lt_u32 s[58:59], s56, v{vT+1}
  s_cmp_lg_u64 vcc, 0
  s_cselect_b32 s56, 1, 0
  s_max_u32 s63, s63, s56
  s_cmp_lg_u64 s[58:59], 0
  s_cselect_b32 s56, 2, 0
  s_max_u32 s63, s63, s56
  s_branch B_modedone
B_final_phase2:
  s_waitcnt lgkmcnt(0)
  s_barrier
  s_mov_b32 exec_lo, 0
  s_mov_b32 exec_hi, s49
  s_mov_b32 s63, 0
  s_branch B_final_rmw
B_final_special:
  s_cmp_ge_u32 s63, 2
  s_cbranch_scc1 B_final_atomic
  s_mov_b32 exec_hi, 0
  s_branch B_final_rmw
B_final_atomic:
  v_cmp_le_u32 vcc, {NS}, v{vT+5}
  s_and_b64 exec, exec, vcc""")
for k in range(8):
    A(f"  ds_add_f32 v{vT+5}, v{vD+k} offset:{(k//4)*256 + (k%4)*4}")
A("  s_branch B_final_done")
A(f"""B_mark:
  s_mov_b64 exec, vcc
  v_lshrrev_b32 v{vT}, 3, v0
  v_mov_b32 v{vT+1}, 1
  v_lshlrev_b32 v{vT+1}, v{vT}, v{vT+1}
  v_lshrrev_b32 v{vT}, 5, v{vT}
  v_lshlrev_b32 v{vT}, 2, v{vT}
  ds_or_b32 v{vT}, v{vT+1} offset:{L_FLAGS}
  s_mov_b64 exec, -1""")
for i in range(4):
    A(f"  v_cmp_gt_u32 vcc, 0xfc, v{vP+i}\n  s_nop 1\n  v_cndmask_b32 v{vP+i}, 0, v{vP+i}, vcc")
A("  s_branch B_nomark")
def ovf_srd():
    A(f"""  s_add_u32 s{rOVF}, s{sWS}, {WS_OVF:#x}
  s_addc_u32 s{rOVF+1}, s{sWS+1}, 0
  s_mov_b32 s{rOVF+2}, {OVFCNT_REL + NCH*4}
  s_mov_b32 s{rOVF+3}, 0x20000""")
A("F_ovf:")
ovf_srd()
A(f"""  v_mov_b32 v{vT+5}, {P_OCNT}
  v_mov_b32 v{vT+6}, 62
  s_mul_i32 s3, s2, 12800""")
for i in range(4):
    A(f"""  v_cmp_le_u32 vcc, s58, v{pR+i}
  v_min_u32 v{pR+i}, s58, v{pR+i}
  s_mov_b64 exec, vcc
  s_cbranch_execz F_ov{i}
  ds_add_rtn_u32 v{vT+7}, v{vT+5}, v{vT+4}
  v_lshl_or_b32 v{pE+i}, v{pS+i}, 14, v{pD+i}
  s_waitcnt lgkmcnt(0)
  buffer_store_dword v{pE+i}, v{vT+7}, s[{rOVF}:{rOVF+3}], s3 offen sc1
  s_nop 0
  v_mov_b32 v{pE+i}, v{vT+6}
F_ov{i}:
  s_mov_b64 exec, s[40:41]""")
A(f"""  s_waitcnt vmcnt(0)
  s_branch F_ovfdone
F_cnt:
  s_cmp_lg_u32 s{sW}, 0
  s_cbranch_scc1 F_cnt2""")
ovf_srd()
A(f"""  s_lshl_b32 s60, s2, 2
  s_add_u32 s60, s60, {OVFCNT_REL:#x}
  v_mov_b32 v{pB+2}, 0
  v_lshrrev_b32 v{pB}, 2, v{pB}
  s_mov_b64 exec, 1
  buffer_store_dword v{pB}, v{pB+2}, s[{rOVF}:{rOVF+3}], s60 offen sc1
  s_mov_b64 exec, -1
  s_waitcnt vmcnt(0)
F_cnt2:
  s_barrier
  s_branch F_cntdone
F_giveup:
  s_mov_b64 exec, -1
  v_mov_b32 v{vT}, {L_FLAGS+12}
  v_bfrev_b32 v{vT+1}, 1
  ds_or_b32 v{vT}, v{vT+1}""")
movs(vE, 4, 0)
A(f"""  s_branch F_polled
B_raw:
  s_mov_b32 s50, -1
  s_mov_b32 s51, -1
  s_mov_b32 s52, -1
  s_mov_b32 s53, 0x1fffffff
  s_mov_b32 s62, 3
B_more:
  s_waitcnt vmcnt(0) lgkmcnt(0)
  s_barrier
  s_ff1_i32_b32 s56, s50
  s_cmp_lg_u32 s50, 0
  s_cbranch_scc0 B_m1
  s_bitset0_b32 s50, s56
  s_branch B_mdone
B_m1:
  s_ff1_i32_b32 s56, s51
  s_cmp_lg_u32 s51, 0
  s_cbranch_scc0 B_m2
  s_bitset0_b32 s51, s56
  s_add_u32 s56, s56, 32
  s_branch B_mdone
B_m2:
  s_ff1_i32_b32 s56, s52
  s_cmp_lg_u32 s52, 0
  s_cbranch_scc0 B_m3
  s_bitset0_b32 s52, s56
  s_add_u32 s56, s56, 64
  s_branch B_mdone
B_m3:
  s_ff1_i32_b32 s56, s53
  s_bitset0_b32 s53, s56
  s_add_u32 s56, s56, 96
B_mdone:
  s_mul_i32 s57, s56, 12800
  s_cmp_eq_u32 s62, 3
  s_cbranch_scc1 B_mraw
  s_mov_b32 s62, 2""")
ovf_srd()
A(f"""  s_lshl_b32 s58, s56, 2
  s_add_u32 s58, s58, {OVFCNT_REL:#x}
  v_mov_b32 v{vT}, 0
  buffer_load_dword v{vT+1}, v{vT}, s[{rOVF}:{rOVF+3}], s58 offen sc1
  buffer_load_dwordx4 v[{vE}:{vE+3}], v{vT16}, s[{rOVF}:{rOVF+3}], s57 offen sc1
  s_waitcnt vmcnt(0)
  v_readfirstlane_b32 s60, v{vT+1}
  s_branch B_mgot
B_mraw:
  s_mov_b64 s[{rOVF}:{rOVF+1}], s[{sDST}:{sDST+1}]
  s_mov_b32 s{rOVF+2}, 1600000
  s_mov_b32 s{rOVF+3}, 0x20000
  buffer_load_dwordx4 v[{vE}:{vE+3}], v{vT16}, s[{rOVF}:{rOVF+3}], s57 offen
  s_waitcnt vmcnt(0)
  s_mov_b64 s[{rOVF}:{rOVF+1}], s[{sSRC}:{sSRC+1}]
  buffer_load_dwordx4 v[{vR}:{vR+3}], v{vT16}, s[{rOVF}:{rOVF+3}], s57 offen
  s_movk_i32 s60, {CH}
  s_waitcnt vmcnt(0)""")
for i in range(4):
    A(f"  v_lshl_or_b32 v{vE+i}, v{vR+i}, 14, v{vE+i}")
A("B_mgot:")
movs(vD, 4, 0)
A(f"""  v_cmp_gt_u32 vcc, 16, v0
  s_mov_b64 exec, vcc
  ds_write_b128 v{vT16}, v[{vD}:{vD+3}] offset:{L_CNT}
  s_mov_b64 exec, -1
  ds_write_b128 v{vT16}, v[{vD}:{vD+3}] offset:{L_LIST}
  ds_write_b128 v{vT16}, v[{vD}:{vD+3}] offset:49152
  s_mul_i32 s61, s2, {NPB}
  s_sub_u32 s61, s61, 1
  v_lshlrev_b32 v{vT}, 2, v0
  s_min_u32 s60, s60, {CH}""")
for i in range(4):
    A(f"""  v_and_b32 v{vT+1}, 0x3fff, v{vE+i}
  v_subrev_u32 v{vT+1}, s61, v{vT+1}       ; local+1
  v_lshrrev_b32 v{vE+i}, 14, v{vE+i}
  v_lshl_or_b32 v{vE+i}, v{vE+i}, 8, v{vT+1}
  v_add_u32 v{vT+2}, {i}, v{vT}
  v_cmp_gt_u32 vcc, s60, v{vT+2}
  v_add_u32 v{vT+1}, -1, v{vT+1}
  v_cmp_gt_u32 s[56:57], {NPB}, v{vT+1}
  s_and_b64 vcc, vcc, s[56:57]
  s_nop 1
  v_cndmask_b32 v{vE+i}, 0, v{vE+i}, vcc""")
A("""  s_waitcnt lgkmcnt(0)
  s_barrier
  s_branch B_build""")

A(f"""
.section .rodata,"a"
.p2align 6
.amdhsa_kernel {KN}
  .amdhsa_next_free_vgpr {NV}
  .amdhsa_next_free_sgpr 102
  .amdhsa_accum_offset {(NV+3)//4*4}
  .amdhsa_group_segment_fixed_size 0
  .amdhsa_kernarg_size 64
  .amdhsa_user_sgpr_count 2
  .amdhsa_user_sgpr_kernarg_segment_ptr 1
  .amdhsa_system_sgpr_workgroup_id_x 1
.end_amdhsa_kernel""")
print("\n".join(L))
```

```python
import sys, struct, math

N = 12500; E = 400000
NPB = 49; NB = 256
CH = 3200; NCH = 125
CELL0 = 2048
CELLROW = NCH * 128
WS_OVF = 0x900000
OVFCNT_REL = 0x200000
WS_TS = 0x1000000
TK = [0x00000000, 0x6B400000, 0xD6800000, 0x41C00000]
PADC = 0x7FC00000

opt = dict(of=0, cw=0, pre=0, xb=1, xn=0, ua=0, ub=0, ql=0, pk=13, pq=0, prio=1, bp=0, xnt=0, xe=1, ts=0, pf=0, pfp=0, pfl=0, limit=40000, slp=2, na=1024)
for a in sys.argv[1:]:
    k, v = a.split("=")
    opt[k] = int(v, 0)

OF = ["", " sc1", " nt", " sc0 sc1"][opt["of"]]
L = []
def A(s):
    for line in s.split("\n"):
        L.append(line)

NS = 784
L_CNT = 50 * NS
L_FLAGS = L_CNT + 256
L_LIST = L_FLAGS + 32
L_QN = L_LIST + 1088 * 16
L_WQ = 65536
L_XO = L_WQ + 32768
L_WV = L_XO + 16384
LDS_TOTAL = L_WV + 32768
P_CNT = 32768
P_OCNT = P_CNT + 1024

sX, sSRC, sDST, sWQ = 4, 6, 8, 10
sWV, sOUT, sDBG, sWS = 64, 66, 68, 70
rX, rOUT, rOVF = 12, 16, 20
sT = 24
sTP = 28
sCM = 32
sEP = 35
sW = 36; sP = 37; sU = 38; sODD = 39
sT64 = 72; sMO = 100; sMQ = 74; sMC = 44; sQL = 73
vT16 = 1; vL16 = 2
cXC, cLQ, cACQ, cIDX = 4, 5, 6, 7
cWF, cBF, cQD, cPO = 8, 9, 10, 11
cS16, cSL, cCMA, cCMB = 12, 13, 14, 15
cAR, cSW, cOUT, cNODE = 16, 17, 18, 19
vLB = 20; vQB = 21
vI = 22; vQA = [24, 26, 28]
vT = 30
vA = 38; vAa = 42; vAb = 46
vD = 50
vQ = 58
vX = [74, 90, 106]
vE = 106; vR = 110; vP = 114
vPF = 122
cL4 = 124; cPAD = 125; cFOUR = 126; cSR = 123-1
NV = 128

KN = "standalone__kernel_systems_refs_featgraph__graph_kernel"
for line in open("standalone__kernel_systems_refs_featgraph__graph.s.ref").read().split("\n"):
    if line.startswith("; Override"): break
    A(line)
A(f"; @launch grid=(256,1,1) block=(1024,1,1) lds={LDS_TOTAL}")
A('.amdgcn_target "amdgcn-amd-amdhsa--gfx950"')
A(".text")

TSR = [80+2*i for i in range(9)] + [22, 76, 78, 0]
def ts(i):
    if opt["ts"]:
        A(f"  s_memrealtime s[{TSR[i]}:{TSR[i]+1}]")

def ts_store(idx):
    A("  s_waitcnt lgkmcnt(0)")
    A(f"  s_add_u32 s98, s{sWS}, {WS_TS:#x}")
    A(f"  s_addc_u32 s99, s{sWS+1}, 0")
    A(f"  s_mov_b64 exec, 1")
    A(f"  v_lshrrev_b32 v1, 6, v0")
    A(f"  s_lshl_b32 s3, s2, 4")
    A(f"  v_add_u32 v1, s3, v1")
    A(f"  v_lshlrev_b32 v1, 7, v1")
    for j, i in enumerate(idx):
        A(f"  v_mov_b32 v2, s{TSR[i]}")
        A(f"  v_mov_b32 v3, s{TSR[i]+1}")
        A(f"  global_store_dwordx2 v1, v[2:3], s[98:99] offset:{j*8}")
        A(f"  s_nop 1")

def movs(base, n, val):
    for k in range(n):
        A(f"  v_mov_b32 v{base+k}, {val}")

def zero_fill(z):
    for k in range(4):
        A(f"  ds_write_b128 v{vT16}, v[{z}:{z+3}] offset:{k*16384}")

def dma_w(base, sreg):
    A(f"""  s_lshl_b32 s56, s{sW}, 10
  s_add_u32 m0, s56, {base}
  v_add_u32 v{vT+2}, 0x4000, v2
  global_load_lds_dwordx4 v2, s[{sreg}:{sreg+1}]
  s_add_u32 m0, s56, {base+16384}
  s_nop 0
  global_load_lds_dwordx4 v{vT+2}, s[{sreg}:{sreg+1}]""")

def consts():
    t = vT
    A(f"""  s_and_b32 s56, s{sW}, 3
  s_lshl_b32 s57, s56, 2                   ; T'*4
  s_lshl_b32 s{sT64}, s56, 6               ; T'*64
  s_and_b32 s58, s{sW}, 12
  s_lshl_b32 s58, s58, 2                   ; 16*tile
  v_and_b32 v{t}, 7, v0
  v_lshlrev_b32 v{t}, 4, v{t}              ; u*16
  v_or_b32 v{cXC}, {PADC:#x}, v{t}
  v_add_u32 v{cLQ}, 512, v{t}
  v_and_b32 v{t+1}, 16, v0
  v_add_u32 v{t+1}, v{t+1}, v{t}
  v_subrev_u32 v{cACQ}, 512, v{t+1}
  v_lshrrev_b32 v{t+1}, 3, v0
  s_movk_i32 s59, {CELLROW}
  v_mad_u32_u24 v{cPO}, v{t+1}, s59, v{t}
  v_and_b32 v{t+1}, 3, v0                  ; c
  v_mul_u32_u24 v{cIDX}, 0x5555, v{t+1}
  s_lshl_b32 s59, s{sW}, 3
  s_and_b32 s59, s59, 48                   ; 16*(w>>1)
  v_bfe_u32 v{t+2}, v0, 3, 3
  v_mul_u32_u24 v{cSR}, 144, v{t+2}
  v_add_u32 v{cSR}, v{cSR}, v{t}
  v_add_u32 v{t+2}, s59, v{t+2}
  v_lshl_add_u32 v{cOUT}, v{t+2}, 8, v{t}
  v_cmp_gt_u32 vcc, {NPB}, v{t+2}
  v_cmp_gt_u32 s[{sMO}:{sMO+1}], {NPB-8}, v{t+2}
  v_bfrev_b32 v{t+2}, 2
  v_cndmask_b32 v{cOUT}, v{t+2}, v{cOUT}, vcc
  v_and_b32 v{t}, 15, v0                   ; j
  v_xor_b32 v{t+1}, s57, v{t}
  v_and_b32 v{t+2}, 12, v0
  v_and_b32 v{t+3}, 48, v0
  s_mov_b32 s59, {L_WQ}
  v_lshl_add_u32 v{cWF}, v{t+3}, 7, s59
  v_lshl_add_u32 v{cWF}, v{t+2}, 6, v{cWF}
  v_lshl_add_u32 v{cWF}, v{t+1}, 4, v{cWF}
  v_bfe_u32 v{t+1}, v0, 4, 2               ; g
  v_xor_b32 v{t+2}, v{t+1}, v{t}
  v_add_u32 v{t+3}, s58, v{t}              ; node
  s_mov_b32 s59, {L_XO}
  v_lshl_add_u32 v{cBF}, v{t+3}, 8, s59
  v_lshl_add_u32 v{cBF}, v{t+2}, 4, v{cBF}
  v_cmp_gt_u32 s[{sMQ}:{sMQ+1}], {NPB}, v{t+3}
  v_mul_u32_u24 v{t+3}, {NS}, v{t+3}
  s_lshl_b32 s59, s{sW}, 3
  s_and_b32 s59, s59, 48
  v_add_u32 v{t+2}, s59, v{t}
  v_mul_u32_u24 v{t+2}, {NS}, v{t+2}
  v_lshl_add_u32 v{cAR}, v{t+1}, 5, v{t+2}
  v_lshl_add_u32 v{cQD}, v{t+1}, 4, v{t+3}
  v_add_u32 v{cQD}, s{sT64}, v{cQD}
  s_mov_b32 s59, {L_LIST}
  v_lshl_add_u32 v{cSL}, v{t+1}, 2, s59
  v_mul_u32_u24 v{t}, 144, v{t}
  s_mul_i32 s57, s{sW}, 2304
  s_add_u32 s57, s57, s59
  v_lshl_add_u32 v{t}, v{t+1}, 4, v{t}
  v_add_u32 v{cSW}, s57, v{t}
  v_add_u32 v{cSR}, s57, v{cSR}
  v_and_b32 v{t}, 8, v0
  s_lshl_b32 s57, s{sW}, 5
  v_lshl_add_u32 v{cS16}, v{t}, 1, s57
  v_bfe_u32 v{t}, v0, 5, 1
  s_lshl_b32 s57, s{sW}, 3
  v_lshl_add_u32 v{cCMA}, v{t}, 2, s57
  v_and_b32 v{t}, 31, v0
  s_mov_b32 s59, {L_QN-4}
  v_lshl_add_u32 v{cCMB}, v{t}, 2, s59
  v_and_b32 v{t}, 63, v0
  v_mul_u32_u24 v{cNODE}, {NS}, v{t}
  s_mov_b32 s54, 0x400000
  s_mov_b32 s55, 0x3fff00
  s_mov_b32 s62, 0
  s_mov_b32 s48, 0x00ff00ff
  s_mov_b32 s49, 0xff00ff00""")
    movs(vA, 12, 0)
    A(f"""  v_bfe_u32 v{cL4}, v{vT16}, 2, 8
  v_mov_b32 v{cPAD}, {PADC:#x}
  v_mov_b32 v{cFOUR}, 4
  s_mov_b64 s[50:51], 0
  s_mov_b64 s[52:53], 0
  s_mul_i32 s3, s2, {CELLROW}
  v_add_u32 v127, s3, v{vT16}
  v_mov_b32 v{t}, 1000
  v_cmp_gt_u32 s[{sMC}:{sMC+1}], v{t}, v0
  s_mov_b32 s61, 0xbe0293ee                ; -log2(e)/sqrt(128)
  s_mov_b32 s60, {opt["limit"]}""")
    movs(vE, 4, 0)
    if opt["pk"] or opt["pq"]: pf_setup(0)

def dma_x(lbl):
    A(f"""  s_lshl_b32 s56, s{sW}, 10
  s_add_u32 m0, s56, {L_XO}
  s_mul_i32 s57, s2, {NPB*256}
  s_cmp_gt_u32 s{sW}, 12
  s_cbranch_scc1 {lbl}
  buffer_load_dwordx4 v3, s[{rX}:{rX+3}], s57 offen{" nt" if opt["xnt"] else ""} lds
{lbl}:""")

def tags():
    A(f"""  s_add_u32 s{sEP}, s{sEP}, 1
  s_lshl_b32 s{sT}, s{sEP}, 22""")
    for k in range(1, 4):
        A(f"  s_xor_b32 s{sT+k}, s{sT}, {TK[k]:#x}")

NA = opt["na"]
NP = (25000 - 16 * NA + 15) // 16
def prefetch(grpP, lbl):
    n = NP if grpP else NA
    if n <= 0:
        return 0
    A(f"  s_lshr_b32 s3, s2, 3")
    if grpP:
        A(f"  s_mul_i32 s3, s3, {NP*128}")
        A(f"  s_add_u32 s3, s3, {16*NA*128}")
    else:
        A(f"  s_sub_u32 s3, s3, 16")
        A(f"  s_mul_i32 s3, s3, {NA*128}")
    A(f"  v_lshlrev_b32 v123, 7, v0")
    done = 0
    while done < n:
        m = min(1024, n - done)
        if m < 1024:
            A(f"""  v_mov_b32 v{vPF}, {m}
  v_cmp_gt_u32 vcc, v{vPF}, v0
  s_mov_b64 exec, vcc
  s_cbranch_execz {lbl}""")
        A(f"  buffer_load_dword v2, v123, s[{rX}:{rX+3}], s3 offen")
        done += m
        if done < n:
            A(f"  s_add_u32 s3, s3, {1024*128}")
    A(f"{lbl}:\n  s_mov_b64 exec, -1")

def pf_setup(K):
    A(f"""  s_lshr_b32 s3, s2, 3
  s_mul_i32 s3, s3, 400
  s_mul_i32 s56, s{sW}, 25
  s_add_u32 s3, s3, s56
  s_lshl_b32 s98, s3, 7
  v_lshlrev_b32 v123, 5, v{cL4}""")

def pf_issue(lo, hi):
    m = ((1 << hi) - 1) ^ ((1 << lo) - 1)
    A(f"""  s_mov_b32 exec_lo, {m & 0xffffffff:#x}
  s_mov_b32 exec_hi, {m >> 32:#x}
  buffer_load_dword v2, v123, s[{rX}:{rX+3}], s98 offen
  s_mov_b64 exec, -1""")

def upf(K, skip, lbl):
    m = (1 << K) - 1
    A(f"""  s_cmp_lt_u32 s2, 128
  s_cbranch_scc1 {lbl}
  s_lshr_b32 s3, s2, 3
  s_mul_i32 s3, s3, 784
  s_mul_i32 s56, s{sW}, 49
  s_add_u32 s3, s3, s56
  s_add_u32 s3, s3, {skip}
  s_lshl_b32 s3, s3, 7
  v_lshlrev_b32 v123, 5, v{cL4}
  s_mov_b32 exec_lo, {m & 0xffffffff:#x}
  s_mov_b32 exec_hi, {m >> 32:#x}
  buffer_load_dword v2, v123, s[{rX}:{rX+3}], s3 offen
  s_mov_b64 exec, -1
{lbl}:""")

def w_frag_reads(addr, base, s, off=0):
    for b in range(2):
        r = base + (b*4+s)*4
        A(f"  ds_read_b64_tr_b16 v[{r}:{r+1}], v{addr} offset:{off + s*8192 + 8*b}")
        A(f"  ds_read_b64_tr_b16 v[{r+2}:{r+3}], v{addr} offset:{off + s*8192 + 1024 + 8*b}")

A(f"""
.globl {KN}
.p2align 8
.type {KN},@function
{KN}:""")
ts(0)
pD, pS, pB, pE, pR = 74, 78, 82, 86, 90
A(f"""  s_load_dwordx8 s[4:11], s[0:1], 0
  s_load_dwordx8 s[64:71], s[0:1], 32
  s_cmp_ge_u32 s2, 256
  s_cbranch_scc1 B_done
  v_lshlrev_b32 v{vT16}, 4, v0
  v_readfirstlane_b32 s{sW}, v0
  v_lshlrev_b32 v2, 2, v0
  v_and_b32 v2, 0xc0, v2
  v_xor_b32 v2, v2, v{vT16}
  v_and_b32 v3, 0xf0, v0
  v_xor_b32 v3, v3, v{vT16}
  s_lshr_b32 s{sW}, s{sW}, 6
  s_mov_b32 s{rX+2}, {N*256}
  s_mov_b32 s{rX+3}, 0x20000""")
if opt["cw"]:
    A(f"""  s_cmp_lt_u32 s{sW}, 14
  s_cbranch_scc1 F_nocw
  s_getpc_b64 s[98:99]
F_pc:
  v_and_b32 v120, 127, v0
  v_lshlrev_b32 v120, 7, v120
  v_min_u32 v120, F_code_end-F_pc-4, v120
  global_load_dword v121, v120, s[98:99]
F_nocw:""")
movs(vD, 4, 0)
A(f"""  s_cmp_ge_u32 s2, 125
  s_cbranch_scc1 F_nopart
  s_mul_i32 s3, s2, 12800
  v_add_u32 v{vT}, s3, v{vT16}
  v_mov_b32 v{vT+1}, 800
  v_cmp_gt_u32 s[40:41], v{vT+1}, v0""")
movs(vD+4, 4, -1)
A(f"""  ds_write_b128 v{vT16}, v[{vD+4}:{vD+7}]
  ds_write_b128 v{vT16}, v[{vD+4}:{vD+7}] offset:16384
  ds_write_b128 v{vT16}, v[{vD}:{vD+3}] offset:32768
  s_mov_b64 exec, s[40:41]
  s_waitcnt lgkmcnt(0)
  s_load_dword s{sEP}, s[{sWS}:{sWS+1}], 0
  s_cbranch_execz F_noload
  global_load_dwordx4 v[{pD}:{pD+3}], v{vT}, s[{sDST}:{sDST+1}] nt
  global_load_dwordx4 v[{pS}:{pS+3}], v{vT}, s[{sSRC}:{sSRC+1}] nt
F_noload:
  s_mov_b64 exec, -1
  s_mov_b64 s[{rX}:{rX+1}], s[{sX}:{sX+1}]
  s_barrier""")
ts(9)
if opt["xb"]: dma_x("F_nx0")
dma_w(L_WQ, sWQ)
consts()
A(f"""  s_mov_b64 exec, s[40:41]
  s_cbranch_execz F_placed
  s_movk_i32 s58, 21400
  v_mov_b32 v{vT+4}, 4
  s_movk_i32 s59, -49
  s_waitcnt vmcnt({4 if opt["xb"] else 3})""")
ts(10)
for i in range(4):
    A(f"  v_mul_u32_u24 v{pB+i}, s58, v{pD+i}")
for i in range(4):
    A(f"  v_lshrrev_b32 v{pB+i}, 20, v{pB+i}")
for i in range(4):
    A(f"  v_mad_i32_i24 v{pE+i}, v{pB+i}, s59, v{pD+i}")
    A(f"  v_lshlrev_b32 v{pB+i}, 2, v{pB+i}")
    A(f"  ds_add_rtn_u32 v{pR+i}, v{pB+i}, v{vT+4} offset:{P_CNT}")
A(f"  s_waitcnt vmcnt({3 if opt['xb'] else 2})")
if not opt["ql"] and not opt["xb"]: dma_x("F_nx0")
ts(11)
for i in range(4):
    A(f"  v_lshl_add_u32 v{pE+i}, v{pS+i}, 8, v{pE+i}")
A("  s_movk_i32 s58, 124")
A("  s_waitcnt lgkmcnt(0)")
A(f"  v_max3_u32 v{vT+5}, v{pR}, v{pR+1}, v{pR+2}")
A(f"  v_max_u32 v{vT+5}, v{vT+5}, v{pR+3}")
A(f"  v_cmp_le_u32 vcc, s58, v{vT+5}")
A(f"  s_cbranch_vccnz F_ovf") if False else A("  s_cmp_lg_u64 vcc, 0\n  s_cbranch_scc1 F_ovf")
A("F_ovfdone:")
for i in range(4):
    A(f"  v_add_u32 v{pR+i}, v{pR+i}, v{pB+i}")
    A(f"  v_and_b32 v{pR+i}, s58, v{pR+i}")
    A(f"  v_lshl_add_u32 v{pR+i}, v{pB+i}, 5, v{pR+i}")
    A(f"  ds_write_b32 v{pR+i}, v{pE+i}")
A(f"""F_placed:
  s_mov_b64 exec, -1
  v_mov_b32 v{vT+4}, {P_OCNT}
  s_waitcnt lgkmcnt(0)
  s_barrier
  {"s_memrealtime s[0:1]" if opt["ts"] else ""}
  ds_read_b32 v{pB}, v{vT+4}
  ds_read_b128 v[{pD}:{pD+3}], v{vT16}
  ds_read_b128 v[{pS}:{pS+3}], v{vT16} offset:16384""")
tags()
for k in range(4):
    A(f"  s_add_u32 s{sTP+k}, s{sT+k}, 1")
A(f"""  s_lshl_b32 s3, s2, 7
  s_add_u32 s56, s{sWS}, s3
  s_addc_u32 s57, s{sWS+1}, 0
  s_add_u32 s58, s56, {128*CELLROW}
  s_addc_u32 s59, s57, 0
  s_waitcnt lgkmcnt(2)
  v_readfirstlane_b32 s99, v{pB}
  s_cmp_lg_u32 s99, 0
  s_cbranch_scc1 F_cnt
F_cntdone:
  s_waitcnt lgkmcnt(1)""")
for k in range(4):
    A(f"  v_add_u32 v{pD+k}, s{sTP+k}, v{pD+k}")
A(f"  global_store_dwordx4 v{cPO}, v[{pD}:{pD+3}], s[56:57] offset:{CELL0} sc1")
A("  s_waitcnt lgkmcnt(0)")
for k in range(4):
    A(f"  v_add_u32 v{pS+k}, s{sTP+k}, v{pS+k}")
A(f"  global_store_dwordx4 v{cPO}, v[{pS}:{pS+3}], s[58:59] offset:{CELL0} sc1")
ts(1)
if opt["ql"]:
    dma_x("F_nx0")
    zero_fill(vD)
    dma_w(L_WV, sWV)
    A(f"  s_mov_b32 s{sQL}, 1")
    A("  s_waitcnt lgkmcnt(0)\n  s_barrier")
    ts(2)
    A(f"""  s_mov_b64 exec, s[{sMC}:{sMC+1}]
  global_load_dwordx4 v[{vE}:{vE+3}], v127, s[{sWS}:{sWS+1}] offset:{CELL0} sc1
  s_branch F_wait""")
else:
    zero_fill(vD)
    A(f"  s_mov_b32 s{sQL}, 0")
    A(f"  s_waitcnt vmcnt(2) lgkmcnt(0)\n  s_barrier")
A(f"""  s_branch F_join
F_nopart:""")
zero_fill(vD)
A(f"""  s_waitcnt lgkmcnt(0)
  s_load_dword s{sEP}, s[{sWS}:{sWS+1}], 0
  s_mov_b64 s[{rX}:{rX+1}], s[{sX}:{sX+1}]""")
if opt["xn"]: dma_x("F_nx1")
dma_w(L_WQ, sWQ)
consts()
if not opt["xn"]:
    A("  s_waitcnt vmcnt(0)")
    ts(9)
    dma_x("F_nx1")
if opt["pf"] and not opt["pfl"]:
    assert NA % 1024 == 0
    A("  s_cmp_lt_u32 s2, 128\n  s_cbranch_scc1 F_pfx")
    prefetch(False, "F_pf0")
    A(f"  s_waitcnt vmcnt({NA//1024}) lgkmcnt(0)")
    A("  s_branch F_z\nF_pfx:")
A("  s_waitcnt vmcnt(0) lgkmcnt(0)")
A("F_z:")
A(f"  s_mov_b32 s{sQL}, 0")
tags()
A("  s_barrier")
if opt["pfp"] or (opt["pf"] and opt["pfl"]):
    A("  s_cmp_ge_u32 s2, 128\n  s_cbranch_scc1 F_late")
    if opt["pfp"]: prefetch(True, "F_pfq")
    A("  s_branch F_join\nF_late:")
    if opt["pf"] and opt["pfl"]:
        prefetch(False, "F_pf0")
ts(1)
A("F_join:")
ts(2)
dma_w(L_WV, sWV)
if opt["ua"]: upf(opt["ua"], 0, "F_ua")
if opt["pq"]: pf_issue(0, opt["pq"])
FA = 74; FB = 58
def q_compute(mid=None):
    for s in range(4):
        w_frag_reads(cWF, FA, s)
        if s:
            A(f"  v_xor_b32 v{vI+s-1}, {s*64}, v{cBF}")
            A(f"  ds_read_b128 v[{FB+4*s}:{FB+4*s+3}], v{vI+s-1}")
        else:
            A(f"  ds_read_b128 v[{FB}:{FB+3}], v{cBF}")
    for s in range(4):
        A(f"  s_waitcnt lgkmcnt({min(15,(3-s)*5)})")
        for b in range(2):
            d = vD + 4*b
            a = FA + (b*4+s)*4
            c = "0" if s == 0 else f"v[{d}:{d+3}]"
            A(f"  v_mfma_f32_16x16x32_bf16 v[{d}:{d+3}], v[{a}:{a+3}], v[{FB+4*s}:{FB+4*s+3}], {c}")
    if mid: mid()
    A(f"  s_mov_b64 exec, s[{sMQ}:{sMQ+1}]")
    A("  s_nop 6")
    for k in range(0, 8, 2):
        A(f"  v_pk_mul_f32 v[{vD+k}:{vD+k+1}], v[{vD+k}:{vD+k+1}], s[60:61] op_sel:[0,1] op_sel_hi:[1,1]")
    for k in range(4):
        A(f"  v_cvt_pk_bf16_f32 v{FB+k}, v{vD+2*k}, v{vD+2*k+1}")
    A(f"  ds_write_b128 v{cQD}, v[{FB}:{FB+3}] offset:{NS+512}")
    A("  s_mov_b64 exec, -1")
    for k in range(0, 8, 2):
        A(f"  v_mov_b64 v[{vD+k}:{vD+k+1}], 0")

def first_poll():
    if opt["pre"]:
        A(f"  s_cmp_lt_u32 s2, 125\n  s_cbranch_scc1 F_nopre\n  s_sleep {opt['pre']}\nF_nopre:")
    if opt["ub"]: upf(opt["ub"], opt["ua"], "F_ub")
    A(f"""  s_mov_b64 exec, s[{sMC}:{sMC+1}]
  global_load_dwordx4 v[{vE}:{vE+3}], v127, s[{sWS}:{sWS+1}] offset:{CELL0} sc1""")

q_compute(first_poll)
A("F_wait:")
ts(3)
A(f"""  s_mov_b64 exec, s[{sMC}:{sMC+1}]
  s_branch F_polltest
F_poll:
  s_sleep {opt["slp"]}
  s_sub_u32 s60, s60, 1
  s_cbranch_scc1 F_giveup
  global_load_dwordx4 v[{vE}:{vE+3}], v127, s[{sWS}:{sWS+1}] offset:{CELL0} sc1
F_polltest:
  s_waitcnt vmcnt(0)
  v_xor_b32 v{vT}, s{sT}, v{vE}
  v_bitop3_b32 v{vT}, v{vE+1}, s{sT+1}, v{vT} bitop3:0xbe
  v_bitop3_b32 v{vT}, v{vE+2}, s{sT+2}, v{vT} bitop3:0xbe
  v_bitop3_b32 v{vT}, v{vE+3}, s{sT+3}, v{vT} bitop3:0xbe
  v_cmp_le_u32 vcc, s54, v{vT}
  s_mov_b64 exec, vcc
  s_cbranch_execnz F_poll
F_polled:
  s_mov_b64 exec, -1""")
if opt["pk"]: pf_issue(opt["pq"], opt["pk"])
ts(4)
A("B_build:")
for i in range(4):
    A(f"  v_lshlrev_b32_sdwa v{vP+i}, 2, v{vE+i} dst_sel:DWORD dst_unused:UNUSED_PAD src0_sel:DWORD src1_sel:BYTE_0")
A(f"  v_max3_u32 v{vT}, v{vP}, v{vP+1}, v{vP+2}")
A(f"  v_max_u32 v{vT}, v{vT}, v{vP+3}")
A(f"  v_cmp_lt_u32 vcc, 0xf8, v{vT}")
A(f"  s_cmp_lg_u64 vcc, 0\n  s_cbranch_scc1 B_mark\nB_nomark:")
for i in range(4):
    A(f"  v_cmp_ne_u32 s[{40+2*i}:{41+2*i}], 0, v{vP+i}")
for i in range(4):
    A(f"  s_mov_b64 exec, s[{40+2*i}:{41+2*i}]")
    A(f"  ds_add_rtn_u32 v{vR+i}, v{vP+i}, v{cFOUR} offset:{L_CNT}")
A("  s_mov_b64 exec, -1")
for i in range(4):
    A(f"  v_bitop3_b32 v{vE+i}, v{vE+i}, s55, v{cPAD} bitop3:0x6a")
A(f"""  s_waitcnt lgkmcnt(0)
  s_barrier
  ds_read_b32 v{vT+1}, v{cL4} offset:{L_CNT}
  ds_read_b32 v{vT+7}, v{cFOUR} offset:{L_FLAGS+12}
  s_cmp_lg_u32 s{sQL}, 0
  s_cbranch_scc1 B_lateq
B_lateq_ret:
  s_lshl_b32 s58, s{sW}, 2
  s_mov_b32 s59, s{sW}
  s_waitcnt lgkmcnt(1)
  v_add_u32 v{vT+1}, 12, v{vT+1}
  v_lshrrev_b32 v{vT+1}, 4, v{vT+1}        ; nq
  s_nop 1
  v_add_u32_dpp v{vT+2}, v{vT+1}, v{vT+1} row_shr:1 row_mask:0xf bank_mask:0xf bound_ctrl:0
  s_nop 1
  v_add_u32_dpp v{vT+2}, v{vT+2}, v{vT+2} row_shr:2 row_mask:0xf bank_mask:0xf
  s_nop 1
  v_add_u32_dpp v{vT+2}, v{vT+2}, v{vT+2} row_shr:4 row_mask:0xf bank_mask:0xf
  s_nop 1
  v_add_u32_dpp v{vT+2}, v{vT+2}, v{vT+2} row_shr:8 row_mask:0xf bank_mask:0xf
  s_nop 1
  v_add_u32_dpp v{vT+2}, v{vT+2}, v{vT+2} row_bcast:15 row_mask:0xa bank_mask:0xf
  s_nop 1
  v_add_u32_dpp v{vT+2}, v{vT+2}, v{vT+2} row_bcast:31 row_mask:0xc bank_mask:0xf
  s_nop 0
  v_sub_u32 v{vT}, v{vT+2}, v{vT+1}        ; qstart
  v_readlane_b32 s{sP}, v{vT+2}, 63        ; T4
  v_lshlrev_b32 v{vT+2}, 4, v{vT}          ; qstart*16""")
for i in range(4):
    A(f"  ds_bpermute_b32 v{vP+i}, v{vP+i}, v{vT+2}")
A(f"""  v_lshl_add_u32 v{vT}, v{vT}, 2, s58
  s_add_u32 s{sP}, s{sP}, 31
  s_lshr_b32 s{sP}, s{sP}, 5
B_qn:
  v_cmp_lt_u32 vcc, s59, v{vT+1}
  s_add_u32 s59, s59, 16
  v_cmp_lt_u32 s[56:57], s59, v{vT+1}
  s_mov_b64 exec, vcc
  ds_write_b32 v{vT}, v{cNODE} offset:{L_QN}
  s_mov_b64 exec, -1
  s_cmp_lg_u64 s[56:57], 0
  s_cbranch_scc1 B_qnmore
  v_cmp_lt_u32 vcc, s{sP}, v{vT+1}
  s_mov_b32 s63, s62
  s_cmp_lg_u64 vcc, 0
  s_cbranch_scc1 B_mode
B_modedone:
  v_mad_u32_u24 v{vLB}, v{cS16}, s{sP}, v{cSL}
  v_mul_u32_u24 v{vQB}, s{sP}, v{cS16}
  v_mad_u32_u24 v{vT}, v{cCMA}, s{sP}, v{cCMB}
  v_lshrrev_b32 v{vQB}, 2, v{vQB}
  s_waitcnt lgkmcnt(0)""")
for i in range(4):
    A(f"  v_add_u32 v{vR+i}, v{vR+i}, v{vP+i}")
for i in range(4):
    A(f"  s_mov_b64 exec, s[{40+2*i}:{41+2*i}]")
    A(f"  ds_write_b32 v{vR+i}, v{vE+i} offset:{L_LIST}")
A(f"""  s_mov_b64 exec, -1
  v_readfirstlane_b32 s56, v{vT+7}
  s_cmp_lg_u32 s56, 0
  s_cbranch_scc1 B_flags
B_noflags:""")
A(f"""  s_add_u32 s{sU}, s{sP}, 1
  s_lshr_b32 s{sU}, s{sU}, 1
  s_and_b32 s{sODD}, s{sP}, 1
  s_mul_i32 s57, s{sODD}, 3                ; units-left value at which the unit two ahead has a single pair
  s_cmp_le_u32 s{sP}, 5
  s_waitcnt lgkmcnt(0)
  s_barrier""")
ts(5)
if opt["ts"]: A("  s_memtime s[76:77]")
A(f"""  ds_read2_b32 v[{vI}:{vI+1}], v{vLB} offset0:0 offset1:4
  v_add_u32 v{vQB}, {L_QN}, v{vQB}
  ds_read2_b32 v[{vT+4}:{vT+5}], v{vLB} offset0:8 offset1:12
  ds_read2_b32 v[{vQA[0]}:{vQA[0]+1}], v{vQB} offset0:0 offset1:1
  ds_read2_b32 v[{vT+2}:{vT+3}], v{vT} offset0:0 offset1:1
  s_cbranch_scc1 B_small""")

def loads_a(x, i):
    return (f"  v_xor_b32 v{i}, v{i}, v{cXC}\n"
            f"  buffer_load_dwordx4 v[{x}:{x+3}], v{i}, s[{rX}:{rX+3}], 0 offen\n"
            f"  buffer_load_dwordx4 v[{x+8}:{x+11}], v{i}, s[{rX}:{rX+3}], 0 offen offset:128")
def loads_b(x, i):
    return (f"  v_xor_b32 v{i}, v{i}, v{cXC}\n"
            f"  buffer_load_dwordx4 v[{x+4}:{x+7}], v{i}, s[{rX}:{rX+3}], 0 offen\n"
            f"  buffer_load_dwordx4 v[{x+12}:{x+15}], v{i}, s[{rX}:{rX+3}], 0 offen offset:128")
def q_reads(q):
    A(f"  v_add_u32 v{q}, v{q}, v{cLQ}")
    A(f"  v_add_u32 v{q+1}, v{q+1}, v{cLQ}")
    A(f"  ds_read_b128 v[{vQ}:{vQ+3}], v{q}")
    A(f"  ds_read_b128 v[{vQ+4}:{vQ+7}], v{q+1}")
    A(f"  ds_read_b128 v[{vQ+8}:{vQ+11}], v{q} offset:128")
    A(f"  ds_read_b128 v[{vQ+12}:{vQ+15}], v{q+1} offset:128")

A("B_start:\n  s_waitcnt lgkmcnt(3)")
A(loads_a(vX[0], vI)); A(loads_b(vX[0], vI+1))
A("  s_waitcnt lgkmcnt(2)")
A(loads_a(vX[1], vT+4)); A(loads_b(vX[1], vT+5))
A("B_started:")
A(f"  ds_read2_b32 v[{vI}:{vI+1}], v{vLB} offset0:16 offset1:20")
A("  s_waitcnt lgkmcnt(1)")
A(f"  v_cmp_ne_u32 s[{sCM}:{sCM+1}], v{vT+2}, v{vT+3}")
q_reads(vQA[0])
A(f"""  s_bitset0_b32 s{sCM}, 0
  s_bitset0_b32 s{sCM+1}, 0
  s_or_b32 s34, s{sCM}, s{sCM+1}""")

ool = []
def flush_block(lbl, qa, bit):
    s = f"""{lbl}:
  s_bitcmp1_b32 s{sCM}, {bit}
  s_cselect_b32 exec_lo, s48, 0
  s_bitcmp1_b32 s{sCM+1}, {bit}
  s_cselect_b32 exec_hi, s49, 0
  v_add_u32 v{vT+4}, v{qa}, v{cACQ}
  s_cmp_ge_u32 s63, 2
  s_cbranch_scc1 {lbl}_at
  s_nop 2
  ds_write_b128 v{vT+4}, v[{vD}:{vD+3}]
  ds_write_b128 v{vT+4}, v[{vD+4}:{vD+7}] offset:256
{lbl}_z:
  s_nop 1
"""
    for k in range(0, 8, 2):
        s += f"  v_mov_b64 v[{vD+k}:{vD+k+1}], 0\n"
    s += "  s_mov_b64 exec, -1\n"
    tail = f"{lbl}_at:\n  s_nop 2\n"
    for k in range(8):
        tail += f"  ds_add_f32 v{vT+4}, v{vD+k} offset:{(k//4)*256 + (k%4)*4}\n"
    tail += f"  s_branch {lbl}_z\n"
    return s, tail

def smf(a, x):
    return (f"  v_smfmac_f32_16x16x64_bf16 v[{vD}:{vD+3}], v[{a}:{a+3}], v[{x}:{x+7}], v{cIDX}\n"
            f"  v_smfmac_f32_16x16x64_bf16 v[{vD+4}:{vD+7}], v[{a}:{a+3}], v[{x+8}:{x+15}], v{cIDX}")

def abuild(a, r, rowmask):
    return (f"  v_mov_b32_dpp v{a}, v{r} quad_perm:[0,1,2,3] row_mask:{rowmask:#x} bank_mask:0x5\n"
            f"  v_mov_b32_dpp v{a+1}, v{r} row_half_mirror row_mask:{rowmask:#x} bank_mask:0xa\n"
            f"  v_mov_b32_dpp v{a+2}, v{r} row_half_mirror row_mask:{rowmask:#x} bank_mask:0x5\n"
            f"  v_mov_b32_dpp v{a+3}, v{r} quad_perm:[0,1,2,3] row_mask:{rowmask:#x} bank_mask:0xa")

SH = f"  s_lshr_b32 s34, s34, 2\n  s_lshr_b32 s{sCM}, s{sCM}, 2\n  s_lshr_b32 s{sCM+1}, s{sCM+1}, 2"
def body(n):
    x = vX[n]; xn = vX[(n+2) % 3]
    qa = vQA[n]; qn = vQA[(n+1) % 3]; qp = vQA[(n+2) % 3]
    r = vT + 2
    pa, pb = vT, vT + 1
    A(f"B_u{n}:")
    A(f"  s_bitcmp1_b32 s34, 0")
    A(f"  s_cbranch_scc1 B_fa{n}")
    A(f"B_fa{n}_ret:")
    s, t = flush_block(f"B_fa{n}", qp + 1, 0)
    ool.append(s + f"  s_branch B_fa{n}_ret\n" + t)
    A(f"  ds_read2_b32 v[{qn}:{qn+1}], v{vQB} offset0:{2+2*n} offset1:{3+2*n}")
    A(f"  s_cmp_le_u32 s{sU}, 2")
    A(f"  s_cbranch_scc1 B_nl{n}")
    A(f"  s_cmp_eq_u32 s{sU}, s57")
    A(f"  s_waitcnt lgkmcnt(5)")
    A(loads_a(xn, vI))
    A(f"  s_cbranch_scc1 B_skip{n}")
    A(loads_b(xn, vI+1))
    A(f"  ds_read2_b32 v[{vI}:{vI+1}], v{vLB} offset0:{24+8*n} offset1:{28+8*n}")
    A(f"  s_waitcnt vmcnt(8) lgkmcnt(2)")
    A(f"B_go{n}:")
    ool.append(f"""B_skip{n}:
  s_waitcnt vmcnt(6) lgkmcnt(0)
  s_branch B_go{n}
B_nl{n}:
  {"s_setprio 0" if opt["prio"] else ""}
  s_cmp_eq_u32 s{sU}, 1
  s_cbranch_scc1 B_nl{n}_last
  s_waitcnt vmcnt(2) lgkmcnt(0)
  s_branch B_go{n}
B_nl{n}_last:
  s_lshl_b32 s56, s{sODD}, 1
  s_or_b32 s34, s34, s56
  s_waitcnt vmcnt(0) lgkmcnt(0)
  s_branch B_go{n}
""")
    order = [(0, 4), (1, 5), (2, 6), (3, 7), (8, 12), (9, 13), (10, 14), (11, 15)]
    for k, (ia, ib) in enumerate(order):
        ca = "0" if k == 0 else f"v{pa}"
        cb = "0" if k == 0 else f"v{pb}"
        A(f"  v_dot2_f32_bf16 v{pa}, v{x+ia}, v{vQ+ia}, {ca}")
        A(f"  v_dot2_f32_bf16 v{pb}, v{x+ib}, v{vQ+ib}, {cb}")
    A("  s_waitcnt lgkmcnt(1)")
    q_reads(qn)
    A(f"  v_permlane32_swap_b32 v{pa}, v{pb}")
    if n == 2:
        A(f"  v_add_u32 v{vLB}, 96, v{vLB}")
        A(f"  v_add_u32 v{vQB}, 24, v{vQB}")
    else:
        A("  s_nop 1")
    A(f"  v_permlane16_swap_b32 v{pa}, v{pb}")
    A(f"  s_nop 1")
    A(f"  v_add_f32_dpp v{r}, v{pa}, v{pa} row_half_mirror row_mask:0xf bank_mask:0x5")
    A(f"  v_add_f32_dpp v{r}, v{pb}, v{pb} row_half_mirror row_mask:0xf bank_mask:0xa")
    A(f"  s_nop 1")
    A(f"  v_add_f32_dpp v{r}, v{r}, v{r} quad_perm:[1,0,3,2] row_mask:0xf bank_mask:0xf")
    A(f"  s_nop 1")
    A(f"  v_add_f32_dpp v{r}, v{r}, v{r} quad_perm:[2,3,0,1] row_mask:0xf bank_mask:0xf")
    A(f"  v_exp_f32 v{r}, v{r}")
    A(f"  s_nop 0")
    A(f"  v_add_f32 v{r}, 1.0, v{r}")
    A(f"  v_rcp_f32 v{r}, v{r}")
    A(f"  s_bitcmp1_b32 s34, 1")
    A(f"  v_cvt_pk_bf16_f32 v{r}, v{r}, 0")
    A(f"  s_cbranch_scc1 B_sp{n}")
    A(f"  s_sub_u32 s{sU}, s{sU}, 1")
    A(abuild(vA, r, 0xf))
    A(SH)
    A(smf(vA, x))
    A(f"B_sp{n}_ret:")
    A(f"  s_cmp_eq_u32 s{sU}, 0")
    A(f"  s_cbranch_scc1 B_exit{n}")
    if opt["prio"] == 1 and n == 2:
        A(f"  s_setprio 1")
    if opt["prio"] == 2:
        A(f"""  s_cmp_gt_u32 s{sU}, 5
  s_cbranch_scc1 B_pp{n}
  s_setprio 2
  s_cmp_gt_u32 s{sU}, 3
  s_cbranch_scc1 B_pp{n}
  s_setprio 1
B_pp{n}:""")
    if opt["prio"] == 3:
        A(f"""  s_cmp_gt_u32 s{sU}, 5
  s_cbranch_scc1 B_pp{n}
  s_setprio 2
  s_cmp_gt_u32 s{sU}, 4
  s_cbranch_scc1 B_pp{n}
  s_setprio 1
  s_cmp_gt_u32 s{sU}, 3
  s_cbranch_scc1 B_pp{n}
  s_setprio 0
B_pp{n}:""")
    s, t = flush_block(f"B_sp{n}_f", qa, 1)
    blk = (f"B_sp{n}:\n  s_sub_u32 s{sU}, s{sU}, 1\n" + abuild(vAa, r, 0x3) + "\n" + abuild(vAb, r, 0xc) + "\n"
           + f"  s_add_u32 s56, s{sU}, 1\n  s_cmp_eq_u32 s56, s{sODD}\n" + smf(vAa, x) + f"\n  s_cbranch_scc1 B_odd{n}\n  s_nop 0\n" + s
           + SH + "\n" + smf(vAb, x) + f"\n  s_branch B_sp{n}_ret\n" + t
           + f"B_odd{n}:\n  v_add_u32 v{vT+5}, v{qa}, v{cACQ}\n  s_branch B_final_flush\n"
           + f"B_exit{n}:\n  v_add_u32 v{vT+5}, v{qa+1}, v{cACQ}\n  s_branch B_final_flush\n")
    ool.append(blk)

if opt["prio"]: A("  s_setprio 3")
body(0)
body(1)
body(2)
A("  s_branch B_u0")
A("B_final_flush:")
ts(6)
FE = 58
def wv_frags(lbl):
    A(f"""  s_cmp_gt_u32 s{sW}, 7
  s_cbranch_scc1 {lbl}
  s_and_b32 s56, s{sW}, 1
  s_lshl_b32 s56, s56, 7
  s_xor_b32 s56, s56, s{sT64}
  v_xor_b32 v{vT}, s56, v{cWF}
  v_add_u32 v{vT}, {L_WV - L_WQ}, v{vT}
  v_xor_b32 v{vT+1}, 64, v{vT}""")
    for tp in range(2):
        for s in range(4):
            w_frag_reads(vT + tp, FE + 32*tp, s)
    A(f"{lbl}:")
wv_frags("B_nofr")
RT = 22
A(f"""  s_waitcnt lgkmcnt(0)
  s_barrier
  {"s_memrealtime s[22:23]" if opt["ts"] == 2 else ""}
  s_mov_b64 exec, s[48:49]
  s_cmp_lg_u32 s63, 0
  s_cbranch_scc1 B_final_special
B_final_rmw:
  ds_read_b128 v[{RT}:{RT+3}], v{vT+5}
  ds_read_b128 v[{RT+4}:{RT+7}], v{vT+5} offset:256
  s_waitcnt lgkmcnt(1)""")
for k in range(0, 4, 2):
    A(f"  v_pk_add_f32 v[{vD+k}:{vD+k+1}], v[{vD+k}:{vD+k+1}], v[{RT+k}:{RT+k+1}]")
A(f"  ds_write_b128 v{vT+5}, v[{vD}:{vD+3}]")
A("  s_waitcnt lgkmcnt(1)")
for k in range(4, 8, 2):
    A(f"  v_pk_add_f32 v[{vD+k}:{vD+k+1}], v[{vD+k}:{vD+k+1}], v[{RT+k}:{RT+k+1}]")
A(f"  ds_write_b128 v{vT+5}, v[{vD+4}:{vD+7}] offset:256")
A(f"""  s_cmp_eq_u32 s63, 1
  s_cbranch_scc1 B_final_phase2
B_final_done:
  s_mov_b64 exec, -1
B_round_fin:
  s_or_b32 s56, s50, s51
  s_or_b32 s57, s52, s53
  s_or_b32 s56, s56, s57
  s_cbranch_scc1 B_more
  s_mov_b64 s[{rOUT}:{rOUT+1}], s[{sOUT}:{sOUT+1}]
  s_mov_b32 s{rOUT+2}, {N*256}
  s_mov_b32 s{rOUT+3}, 0x20000
  s_mul_i32 s3, s2, {NPB*256}
  s_and_b32 s56, s{sW}, 1
  s_lshl_b32 s56, s56, 7
  s_add_u32 s3, s3, s56
  s_cmp_gt_u32 s{sW}, 7
  s_waitcnt lgkmcnt(0)
  {"s_memrealtime s[0:1]" if opt["ts"] == 2 else ""}
  s_barrier""")
ts(7)
if opt["ts"]: A("  s_memtime s[78:79]")
A("  s_cbranch_scc1 B_end")
AC = 22
DO = [4, 8, 12, 54]
for s in range(4):
    A(f"  ds_read_b128 v[{AC+8*s}:{AC+8*s+3}], v{cAR} offset:{NS+s*128}")
    A(f"  ds_read_b128 v[{AC+8*s+4}:{AC+8*s+7}], v{cAR} offset:{NS+s*128+16}")
for s in range(4):
    A(f"  s_waitcnt lgkmcnt({6-2*s})")
    for k in range(4):
        A(f"  v_cvt_pk_bf16_f32 v{AC+4*s+k}, v{AC+8*s+2*k}, v{AC+8*s+2*k+1}")
    A("  s_nop 1")
    for tp in range(2):
        for b in range(2):
            d = DO[2*tp+b]
            a = FE + 32*tp + 4*(b*4+s)
            c = "0" if s == 0 else f"v[{d}:{d+3}]"
            A(f"  v_mfma_f32_16x16x32_bf16 v[{d}:{d+3}], v[{a}:{a+3}], v[{AC+4*s}:{AC+4*s+3}], {c}")
if opt["ts"] == 2: ts(1)
A(f"  s_or_b32 s56, s2, s{sW}")
A("  s_nop 4")
for tp in range(2):
    if tp: A("  s_nop 0")
    for k in range(4):
        d = DO[2*tp + k//2] + 2*(k % 2)
        A(f"  v_cvt_pk_bf16_f32 v{38+4*tp+k}, v{d}, v{d+1}")
    A(f"  ds_write_b128 v{cSW}, v[{38+4*tp}:{41+4*tp}] offset:{64*tp}")
A(f"""  ds_read_b128 v[22:25], v{cSR}
  ds_read_b128 v[26:29], v{cSR} offset:1152
  s_waitcnt lgkmcnt(1)
  buffer_store_dwordx4 v[22:25], v{cOUT}, s[{rOUT}:{rOUT+3}], s3 offen{OF}
  s_mov_b64 exec, s[{sMO}:{sMO+1}]
  s_cbranch_execz B_nost2
  s_waitcnt lgkmcnt(0)
  buffer_store_dwordx4 v[26:29], v{cOUT}, s[{rOUT}:{rOUT+3}], s3 offen offset:2048{OF}
B_nost2:
  {"s_memrealtime s[84:85]" if opt["ts"] == 2 else ""}
  s_cbranch_scc1 B_end
  v_mov_b32 v4, 0
  v_mov_b32 v5, s{sEP}
  s_mov_b64 exec, 1
  global_store_dword v4, v5, s[{sWS}:{sWS+1}]
B_end:""")
if opt["ts"]:
    A("  s_waitcnt vmcnt(0)")
    ts(8)
    A("  s_mov_b64 exec, -1")
    ts_store(range(13))
A("B_done:\n  s_endpgm")

for blk in ool:
    A(blk)
A(f"""B_small:
  s_waitcnt lgkmcnt(0)
  s_cmp_eq_u32 s{sP}, 0
  s_cbranch_scc1 B_empty""")
for xb in vX:
    movs(xb+4, 4, 0)
    movs(xb+12, 4, 0)
A(f"  s_cmp_ge_u32 s{sP}, 4\n  s_cbranch_scc1 B_start")
A(loads_a(vX[0], vI))
A(f"  s_cmp_eq_u32 s{sP}, 1\n  s_cbranch_scc1 B_started")
A(loads_b(vX[0], vI+1))
A(f"  s_cmp_eq_u32 s{sP}, 2\n  s_cbranch_scc1 B_started")
A(loads_a(vX[1], vT+4))
A(f"""  s_branch B_started
B_empty:
  s_barrier""")
wv_frags("B_nofr2")
A("  s_branch B_round_fin")
A("B_lateq:")
q_compute()
A(f"""  s_mov_b32 s{sQL}, 0
  s_branch B_lateq_ret
B_flags:
  s_cmp_lg_u32 s62, 0
  s_cbranch_scc1 B_noflags
  v_mov_b32 v{vT+4}, {L_FLAGS}
  ds_read_b128 v[{vT+4}:{vT+7}], v{vT+4}
  s_waitcnt lgkmcnt(0)
  v_readfirstlane_b32 s53, v{vT+7}
  v_readfirstlane_b32 s50, v{vT+4}
  v_readfirstlane_b32 s51, v{vT+5}
  v_readfirstlane_b32 s52, v{vT+6}
  s_bitcmp1_b32 s53, 31
  s_cbranch_scc1 B_raw
  s_branch B_noflags""")
A(f"""B_qnmore:
  v_add_u32 v{vT}, 64, v{vT}
  s_branch B_qn
B_mode:
  s_max_u32 s{sP}, s{sP}, 13               ; short lists: longer streams instead of split nodes
  v_cvt_f32_u32 v{vT+4}, s{sP}
  v_lshrrev_b32 v{vT+5}, 4, v{vT+2}        ; qstart
  v_rcp_f32 v{vT+4}, v{vT+4}
  v_add_u32 v{vT+6}, v{vT+5}, v{vT+1}      ; qend
  v_cvt_f32_u32 v{vT+5}, v{vT+5}
  v_cvt_f32_u32 v{vT+6}, v{vT+6}
  v_add_f32 v{vT+5}, 0.5, v{vT+5}
  v_add_f32 v{vT+6}, 0.5, v{vT+6}
  v_mul_f32 v{vT+5}, v{vT+5}, v{vT+4}
  v_mul_f32 v{vT+6}, v{vT+6}, v{vT+4}
  v_cvt_u32_f32 v{vT+5}, v{vT+5}
  v_cvt_u32_f32 v{vT+6}, v{vT+6}
  v_sub_u32 v{vT+5}, v{vT+6}, v{vT+5}
  v_cmp_lt_u32 vcc, 1, v{vT+5}
  v_cmp_lt_u32 s[58:59], 2, v{vT+5}
  s_cmp_lg_u64 vcc, 0
  s_cselect_b32 s56, 1, 0
  s_max_u32 s63, s63, s56
  s_cmp_lg_u64 s[58:59], 0
  s_cselect_b32 s56, 2, 0
  s_max_u32 s63, s63, s56
  s_branch B_modedone
B_final_phase2:
  s_waitcnt lgkmcnt(0)
  s_barrier
  s_mov_b32 exec_lo, 0
  s_mov_b32 exec_hi, s49
  s_mov_b32 s63, 0
  s_branch B_final_rmw
B_final_special:
  s_cmp_ge_u32 s63, 2
  s_cbranch_scc1 B_final_atomic
  s_mov_b32 exec_hi, 0
  s_branch B_final_rmw
B_final_atomic:
  v_cmp_le_u32 vcc, {NS}, v{vT+5}
  s_and_b64 exec, exec, vcc""")
for k in range(8):
    A(f"  ds_add_f32 v{vT+5}, v{vD+k} offset:{(k//4)*256 + (k%4)*4}")
A("  s_branch B_final_done")
A(f"""B_mark:
  s_mov_b64 exec, vcc
  v_lshrrev_b32 v{vT}, 3, v0
  v_mov_b32 v{vT+1}, 1
  v_lshlrev_b32 v{vT+1}, v{vT}, v{vT+1}
  v_lshrrev_b32 v{vT}, 5, v{vT}
  v_lshlrev_b32 v{vT}, 2, v{vT}
  ds_or_b32 v{vT}, v{vT+1} offset:{L_FLAGS}
  ds_write_b32 v{cFOUR}, v{cFOUR} offset:{L_FLAGS+12}
  s_mov_b64 exec, -1""")
for i in range(4):
    A(f"  v_cmp_gt_u32 vcc, 0xfc, v{vP+i}\n  s_nop 1\n  v_cndmask_b32 v{vP+i}, 0, v{vP+i}, vcc")
A("  s_branch B_nomark")
def ovf_srd():
    A(f"""  s_add_u32 s{rOVF}, s{sWS}, {WS_OVF:#x}
  s_addc_u32 s{rOVF+1}, s{sWS+1}, 0
  s_mov_b32 s{rOVF+2}, {OVFCNT_REL + NCH*4}
  s_mov_b32 s{rOVF+3}, 0x20000""")
A("F_ovf:")
ovf_srd()
A(f"""  v_mov_b32 v{vT+5}, {P_OCNT}
  v_mov_b32 v{vT+6}, 62
  s_mul_i32 s3, s2, 12800""")
for i in range(4):
    A(f"""  v_cmp_le_u32 vcc, s58, v{pR+i}
  v_min_u32 v{pR+i}, s58, v{pR+i}
  s_mov_b64 exec, vcc
  s_cbranch_execz F_ov{i}
  ds_add_rtn_u32 v{vT+7}, v{vT+5}, v{vT+4}
  v_lshl_or_b32 v{pE+i}, v{pS+i}, 14, v{pD+i}
  s_waitcnt lgkmcnt(0)
  buffer_store_dword v{pE+i}, v{vT+7}, s[{rOVF}:{rOVF+3}], s3 offen sc1
  s_nop 0
  v_mov_b32 v{pE+i}, v{vT+6}
F_ov{i}:
  s_mov_b64 exec, s[40:41]""")
A(f"""  s_waitcnt vmcnt(0)
  s_branch F_ovfdone
F_cnt:
  s_cmp_lg_u32 s{sW}, 0
  s_cbranch_scc1 F_cnt2""")
ovf_srd()
A(f"""  s_lshl_b32 s99, s2, 2
  s_add_u32 s99, s99, {OVFCNT_REL:#x}
  v_mov_b32 v{pB+2}, 0
  v_lshrrev_b32 v{pB}, 2, v{pB}
  s_mov_b64 exec, 1
  buffer_store_dword v{pB}, v{pB+2}, s[{rOVF}:{rOVF+3}], s99 offen sc1
  s_mov_b64 exec, -1
  s_waitcnt vmcnt(0)
F_cnt2:
  s_barrier
  s_branch F_cntdone
F_giveup:
  s_mov_b64 exec, -1
  v_mov_b32 v{vT}, {L_FLAGS+12}
  v_bfrev_b32 v{vT+1}, 1
  ds_or_b32 v{vT}, v{vT+1}
  ds_write_b32 v{cFOUR}, v{cFOUR} offset:{L_FLAGS+12}""")
movs(vE, 4, 0)
A(f"""  s_branch F_polled
B_raw:
  s_mov_b32 s50, -1
  s_mov_b32 s51, -1
  s_mov_b32 s52, -1
  s_mov_b32 s53, 0x1fffffff
  s_mov_b32 s62, 3
B_more:
  s_waitcnt vmcnt(0) lgkmcnt(0)
  s_barrier
  s_ff1_i32_b32 s56, s50
  s_cmp_lg_u32 s50, 0
  s_cbranch_scc0 B_m1
  s_bitset0_b32 s50, s56
  s_branch B_mdone
B_m1:
  s_ff1_i32_b32 s56, s51
  s_cmp_lg_u32 s51, 0
  s_cbranch_scc0 B_m2
  s_bitset0_b32 s51, s56
  s_add_u32 s56, s56, 32
  s_branch B_mdone
B_m2:
  s_ff1_i32_b32 s56, s52
  s_cmp_lg_u32 s52, 0
  s_cbranch_scc0 B_m3
  s_bitset0_b32 s52, s56
  s_add_u32 s56, s56, 64
  s_branch B_mdone
B_m3:
  s_ff1_i32_b32 s56, s53
  s_bitset0_b32 s53, s56
  s_add_u32 s56, s56, 96
B_mdone:
  s_mul_i32 s57, s56, 12800
  s_cmp_eq_u32 s62, 3
  s_cbranch_scc1 B_mraw
  s_mov_b32 s62, 2""")
ovf_srd()
A(f"""  s_lshl_b32 s58, s56, 2
  s_add_u32 s58, s58, {OVFCNT_REL:#x}
  v_mov_b32 v{vT}, 0
  buffer_load_dword v{vT+1}, v{vT}, s[{rOVF}:{rOVF+3}], s58 offen sc1
  buffer_load_dwordx4 v[{vE}:{vE+3}], v{vT16}, s[{rOVF}:{rOVF+3}], s57 offen sc1
  s_waitcnt vmcnt(0)
  v_readfirstlane_b32 s60, v{vT+1}
  s_branch B_mgot
B_mraw:
  s_mov_b64 s[{rOVF}:{rOVF+1}], s[{sDST}:{sDST+1}]
  s_mov_b32 s{rOVF+2}, 1600000
  s_mov_b32 s{rOVF+3}, 0x20000
  buffer_load_dwordx4 v[{vE}:{vE+3}], v{vT16}, s[{rOVF}:{rOVF+3}], s57 offen
  s_waitcnt vmcnt(0)
  s_mov_b64 s[{rOVF}:{rOVF+1}], s[{sSRC}:{sSRC+1}]
  buffer_load_dwordx4 v[{vR}:{vR+3}], v{vT16}, s[{rOVF}:{rOVF+3}], s57 offen
  s_movk_i32 s60, {CH}
  s_waitcnt vmcnt(0)""")
for i in range(4):
    A(f"  v_lshl_or_b32 v{vE+i}, v{vR+i}, 14, v{vE+i}")
A("B_mgot:")
movs(vD, 8, 0)
A(f"""  v_cmp_gt_u32 vcc, 16, v0
  s_mov_b64 exec, vcc
  ds_write_b128 v{vT16}, v[{vD}:{vD+3}] offset:{L_CNT}
  s_mov_b64 exec, -1
  ds_write_b128 v{vT16}, v[{vD}:{vD+3}] offset:{L_LIST}
  ds_write_b128 v{vT16}, v[{vD}:{vD+3}] offset:49152
  s_mul_i32 s61, s2, {NPB}
  s_sub_u32 s61, s61, 1
  v_lshlrev_b32 v{vT}, 2, v0
  s_min_u32 s60, s60, {CH}""")
for i in range(4):
    A(f"""  v_and_b32 v{vT+1}, 0x3fff, v{vE+i}
  v_subrev_u32 v{vT+1}, s61, v{vT+1}       ; local+1
  v_lshrrev_b32 v{vE+i}, 14, v{vE+i}
  v_lshl_or_b32 v{vE+i}, v{vE+i}, 8, v{vT+1}
  v_add_u32 v{vT+2}, {i}, v{vT}
  v_cmp_gt_u32 vcc, s60, v{vT+2}
  v_add_u32 v{vT+1}, -1, v{vT+1}
  v_cmp_gt_u32 s[56:57], {NPB}, v{vT+1}
  s_and_b64 vcc, vcc, s[56:57]
  s_nop 1
  v_cndmask_b32 v{vE+i}, 0, v{vE+i}, vcc""")
A("""  s_waitcnt lgkmcnt(0)
  s_barrier
  s_branch B_build
F_code_end:""")

A(f"""
.section .rodata,"a"
.p2align 6
.amdhsa_kernel {KN}
  .amdhsa_next_free_vgpr {NV}
  .amdhsa_next_free_sgpr 102
  .amdhsa_accum_offset {(NV+3)//4*4}
  .amdhsa_group_segment_fixed_size 0
  .amdhsa_kernarg_size 64
  .amdhsa_user_sgpr_count 2
  .amdhsa_user_sgpr_kernarg_segment_ptr 1
  .amdhsa_system_sgpr_workgroup_id_x 1
.end_amdhsa_kernel""")
print("\n".join(L))
```

```python
import sys, struct, math

N = 12500; E = 400000
NPB = 49; NB = 256
CH = 3200; NCH = 125
CELL0 = 2048
CELLROW = NCH * 128
WS_OVF = 0x900000
OVFCNT_REL = 0x200000
WS_TS = 0x1000000
TK = [0x00000000, 0x6B400000, 0xD6800000, 0x41C00000]
PADC = 0x7FC00000

opt = dict(so=8, wt=0, noq=0, pp=0, of=1, cw=1, pre=0, xb=1, xn=0, ua=0, ub=0, ql=0, pk=13, pq=0, prio=1, bp=0, xnt=0, xe=1, ts=0, pf=0, pfp=0, pfl=0, limit=40000, slp=2, na=1024)
for a in sys.argv[1:]:
    k, v = a.split("=")
    opt[k] = int(v, 0)

OF = ["", " sc1", " nt", " sc0 sc1"][opt["of"]]
L = []
def A(s):
    for line in s.split("\n"):
        L.append(line)

NS = 784
L_CNT = 50 * NS
L_FLAGS = L_CNT + 256
L_LIST = L_FLAGS + 32
L_QN = L_LIST + 1088 * 16
L_WQ = 65536
L_XO = L_WQ + 32768
L_WV = L_XO + 16384
LDS_TOTAL = L_WV + 32768
P_CNT = 32768
P_OCNT = P_CNT + 1024

sX, sSRC, sDST, sWQ = 4, 6, 8, 10
sWV, sOUT, sDBG, sWS = 64, 66, 68, 70
rX, rOUT, rOVF = 12, 16, 20
sT = 24
sTP = 28
sCM = 32
sEP = 35
sW = 36; sP = 37; sU = 38; sODD = 39
sT64 = 72; sMO = 100; sMQ = 74; sMC = 44; sQL = 73
vT16 = 1; vL16 = 2
cXC, cLQ, cACQ, cIDX = 4, 5, 6, 7
cWF, cBF, cQD, cPO = 8, 9, 10, 11
cS16, cSL, cCMA, cCMB = 12, 13, 14, 15
cAR, cSW, cOUT, cNODE = 16, 17, 18, 19
vLB = 20; vQB = 21
vI = 22; vQA = [24, 26, 28]
vT = 30
vA = 38; vAa = 42; vAb = 46
vD = 50
vQ = 58
vX = [74, 90, 106]
vV = 118; vE = 106; vR = 110; vP = 114
vPF = 122
cL4 = 124; cPAD = 125; cFOUR = 126; cSR = 123-1
NV = 128

KN = "standalone__kernel_systems_refs_featgraph__graph_kernel"
for line in open("standalone__kernel_systems_refs_featgraph__graph.s.ref").read().split("\n"):
    if line.startswith("; Override"): break
    A(line)
A(f"; @launch grid=(256,1,1) block=(1024,1,1) lds={LDS_TOTAL}")
A('.amdgcn_target "amdgcn-amd-amdhsa--gfx950"')
A(".text")

TSR = [80+2*i for i in range(9)] + [22, 76, 78, 0]
def ts(i):
    if opt["ts"]:
        A(f"  s_memrealtime s[{TSR[i]}:{TSR[i]+1}]")

def ts_store(idx):
    A("  s_waitcnt lgkmcnt(0)")
    A(f"  s_add_u32 s98, s{sWS}, {WS_TS:#x}")
    A(f"  s_addc_u32 s99, s{sWS+1}, 0")
    A(f"  s_mov_b64 exec, 1")
    A(f"  v_lshrrev_b32 v1, 6, v0")
    A(f"  s_lshl_b32 s3, s2, 4")
    A(f"  v_add_u32 v1, s3, v1")
    A(f"  v_lshlrev_b32 v1, 7, v1")
    for j, i in enumerate(idx):
        A(f"  v_mov_b32 v2, s{TSR[i]}")
        A(f"  v_mov_b32 v3, s{TSR[i]+1}")
        A(f"  global_store_dwordx2 v1, v[2:3], s[98:99] offset:{j*8}")
        A(f"  s_nop 1")

def movs(base, n, val):
    for k in range(n):
        A(f"  v_mov_b32 v{base+k}, {val}")

def zero_fill(z):
    for k in range(4):
        A(f"  ds_write_b128 v{vT16}, v[{z}:{z+3}] offset:{k*16384}")

def dma_w(base, sreg):
    A(f"""  s_lshl_b32 s56, s{sW}, 10
  s_add_u32 m0, s56, {base}
  v_add_u32 v{vT+2}, 0x4000, v2
  global_load_lds_dwordx4 v2, s[{sreg}:{sreg+1}]
  s_add_u32 m0, s56, {base+16384}
  s_nop 0
  global_load_lds_dwordx4 v{vT+2}, s[{sreg}:{sreg+1}]""")

def consts():
    t = vT
    A(f"""  s_and_b32 s56, s{sW}, 3
  s_lshl_b32 s57, s56, 2                   ; T'*4
  s_lshl_b32 s{sT64}, s56, 6               ; T'*64
  s_and_b32 s58, s{sW}, 12
  s_lshl_b32 s58, s58, 2                   ; 16*tile
  v_and_b32 v{t}, 7, v0
  v_lshlrev_b32 v{t}, 4, v{t}              ; u*16
  v_or_b32 v{cXC}, {PADC:#x}, v{t}
  v_add_u32 v{cLQ}, 512, v{t}
  v_and_b32 v{t+1}, 16, v0
  v_add_u32 v{t+1}, v{t+1}, v{t}
  v_subrev_u32 v{cACQ}, 512, v{t+1}
  v_bfe_u32 v{t+1}, v0, 3, 3
  s_xor_b32 s59, s{sW}, {opt["so"]}
  s_lshl_b32 s59, s59, 4
  v_add_u32 v{t+1}, s59, v{t+1}
  v_lshl_add_u32 v119, v{t+1}, 7, v{t}     ; its LDS address
  s_movk_i32 s59, {CELLROW}
  v_mad_u32_u24 v{cPO}, v{t+1}, s59, v{t}
  v_and_b32 v{t+1}, 3, v0                  ; c
  v_mul_u32_u24 v{cIDX}, 0x5555, v{t+1}
  s_lshl_b32 s59, s{sW}, 3
  s_and_b32 s59, s59, 48                   ; 16*(w>>1)
  v_bfe_u32 v{t+2}, v0, 3, 3
  v_mul_u32_u24 v{cSR}, 144, v{t+2}
  v_add_u32 v{cSR}, v{cSR}, v{t}
  v_add_u32 v{t+2}, s59, v{t+2}
  v_lshl_add_u32 v{cOUT}, v{t+2}, 8, v{t}
  v_cmp_gt_u32 vcc, {NPB}, v{t+2}
  v_cmp_gt_u32 s[{sMO}:{sMO+1}], {NPB-8}, v{t+2}
  v_bfrev_b32 v{t+2}, 2
  v_cndmask_b32 v{cOUT}, v{t+2}, v{cOUT}, vcc
  v_and_b32 v{t}, 15, v0                   ; j
  v_xor_b32 v{t+1}, s57, v{t}
  v_and_b32 v{t+2}, 12, v0
  v_and_b32 v{t+3}, 48, v0
  s_mov_b32 s59, {L_WQ}
  v_lshl_add_u32 v{cWF}, v{t+3}, 7, s59
  v_lshl_add_u32 v{cWF}, v{t+2}, 6, v{cWF}
  v_lshl_add_u32 v{cWF}, v{t+1}, 4, v{cWF}
  v_bfe_u32 v{t+1}, v0, 4, 2               ; g
  v_xor_b32 v{t+2}, v{t+1}, v{t}
  v_add_u32 v{t+3}, s58, v{t}              ; node
  s_mov_b32 s59, {L_XO}
  v_lshl_add_u32 v{cBF}, v{t+3}, 8, s59
  v_lshl_add_u32 v{cBF}, v{t+2}, 4, v{cBF}
  v_cmp_gt_u32 s[{sMQ}:{sMQ+1}], {NPB}, v{t+3}
  v_mul_u32_u24 v{t+3}, {NS}, v{t+3}
  s_lshl_b32 s59, s{sW}, 3
  s_and_b32 s59, s59, 48
  v_add_u32 v{t+2}, s59, v{t}
  v_mul_u32_u24 v{t+2}, {NS}, v{t+2}
  v_lshl_add_u32 v{cAR}, v{t+1}, 5, v{t+2}
  v_lshl_add_u32 v{cQD}, v{t+1}, 4, v{t+3}
  v_add_u32 v{cQD}, s{sT64}, v{cQD}
  s_mov_b32 s59, {L_LIST}
  v_lshl_add_u32 v{cSL}, v{t+1}, 2, s59
  v_mul_u32_u24 v{t}, 144, v{t}
  s_mul_i32 s57, s{sW}, 2304
  s_add_u32 s57, s57, s59
  v_lshl_add_u32 v{t}, v{t+1}, 4, v{t}
  v_add_u32 v{cSW}, s57, v{t}
  v_add_u32 v{cSR}, s57, v{cSR}
  v_and_b32 v{t}, 8, v0
  s_lshl_b32 s57, s{sW}, 5
  v_lshl_add_u32 v{cS16}, v{t}, 1, s57
  v_bfe_u32 v{t}, v0, 5, 1
  s_lshl_b32 s57, s{sW}, 3
  v_lshl_add_u32 v{cCMA}, v{t}, 2, s57
  v_and_b32 v{t}, 31, v0
  s_mov_b32 s59, {L_QN-4}
  v_lshl_add_u32 v{cCMB}, v{t}, 2, s59
  v_and_b32 v{t}, 63, v0
  v_mul_u32_u24 v{cNODE}, {NS}, v{t}
  s_mov_b32 s54, 0x400000
  s_mov_b32 s55, 0x3fff00
  s_mov_b32 s62, 0
  s_mov_b32 s48, 0x00ff00ff
  s_mov_b32 s49, 0xff00ff00""")
    movs(vA, 12, 0)
    A(f"""  v_bfe_u32 v{cL4}, v{vT16}, 2, 8
  v_mov_b32 v{cPAD}, {PADC:#x}
  v_mov_b32 v{cFOUR}, 4
  s_mov_b64 s[50:51], 0
  s_mov_b64 s[52:53], 0
  s_mul_i32 s3, s2, {CELLROW}
  v_add_u32 v127, s3, v{vT16}
  v_mov_b32 v{t}, 1000
  v_cmp_gt_u32 s[{sMC}:{sMC+1}], v{t}, v0
  s_mov_b32 s61, 0xbe0293ee                ; -log2(e)/sqrt(128)
  s_mov_b32 s60, {opt["limit"]}""")
    movs(vE, 4, 0)
    if opt["pk"] or opt["pq"]: pf_setup(0)

def dma_x(lbl):
    if opt["noq"]:
        A("  buffer_load_dword v121, v3, s[12:15], 0 offen offset:4000") if False else A("  global_load_dword v121, v2, s[10:11]")
        return
    A(f"""  s_lshl_b32 s56, s{sW}, 10
  s_add_u32 m0, s56, {L_XO}
  s_mul_i32 s57, s2, {NPB*256}
  s_cmp_gt_u32 s{sW}, 12
  s_cbranch_scc1 {lbl}
  buffer_load_dwordx4 v3, s[{rX}:{rX+3}], s57 offen{" nt" if opt["xnt"] else ""} lds
{lbl}:""")

def tags():
    A(f"""  s_add_u32 s{sEP}, s{sEP}, 1
  s_lshl_b32 s{sT}, s{sEP}, 22""")
    for k in range(1, 4):
        A(f"  s_xor_b32 s{sT+k}, s{sT}, {TK[k]:#x}")

NA = opt["na"]
NP = (25000 - 16 * NA + 15) // 16
def prefetch(grpP, lbl):
    n = NP if grpP else NA
    if n <= 0:
        return 0
    A(f"  s_lshr_b32 s3, s2, 3")
    if grpP:
        A(f"  s_mul_i32 s3, s3, {NP*128}")
        A(f"  s_add_u32 s3, s3, {16*NA*128}")
    else:
        A(f"  s_sub_u32 s3, s3, 16")
        A(f"  s_mul_i32 s3, s3, {NA*128}")
    A(f"  v_lshlrev_b32 v123, 7, v0")
    done = 0
    while done < n:
        m = min(1024, n - done)
        if m < 1024:
            A(f"""  v_mov_b32 v{vPF}, {m}
  v_cmp_gt_u32 vcc, v{vPF}, v0
  s_mov_b64 exec, vcc
  s_cbranch_execz {lbl}""")
        A(f"  buffer_load_dword v2, v123, s[{rX}:{rX+3}], s3 offen")
        done += m
        if done < n:
            A(f"  s_add_u32 s3, s3, {1024*128}")
    A(f"{lbl}:\n  s_mov_b64 exec, -1")

def pf_setup(K):
    A(f"""  s_lshr_b32 s3, s2, 3
  s_mul_i32 s3, s3, 400
  s_mul_i32 s56, s{sW}, 25
  s_add_u32 s3, s3, s56
  s_lshl_b32 s98, s3, 7
  v_lshlrev_b32 v123, 5, v{cL4}""")

def pf_issue(lo, hi):
    m = ((1 << hi) - 1) ^ ((1 << lo) - 1)
    A(f"""  s_mov_b32 exec_lo, {m & 0xffffffff:#x}
  s_mov_b32 exec_hi, {m >> 32:#x}
  buffer_load_dword v2, v123, s[{rX}:{rX+3}], s98 offen
  s_mov_b64 exec, -1""")

def upf(K, skip, lbl):
    m = (1 << K) - 1
    A(f"""  s_cmp_lt_u32 s2, 128
  s_cbranch_scc1 {lbl}
  s_lshr_b32 s3, s2, 3
  s_mul_i32 s3, s3, 784
  s_mul_i32 s56, s{sW}, 49
  s_add_u32 s3, s3, s56
  s_add_u32 s3, s3, {skip}
  s_lshl_b32 s3, s3, 7
  v_lshlrev_b32 v123, 5, v{cL4}
  s_mov_b32 exec_lo, {m & 0xffffffff:#x}
  s_mov_b32 exec_hi, {m >> 32:#x}
  buffer_load_dword v2, v123, s[{rX}:{rX+3}], s3 offen
  s_mov_b64 exec, -1
{lbl}:""")

def w_frag_reads(addr, base, s, off=0):
    for b in range(2):
        r = base + (b*4+s)*4
        A(f"  ds_read_b64_tr_b16 v[{r}:{r+1}], v{addr} offset:{off + s*8192 + 8*b}")
        A(f"  ds_read_b64_tr_b16 v[{r+2}:{r+3}], v{addr} offset:{off + s*8192 + 1024 + 8*b}")

A(f"""
.globl {KN}
.p2align 8
.type {KN},@function
{KN}:""")
ts(0)
pD, pS, pB, pE, pR = 74, 78, 82, 86, 90
A(f"""  s_load_dwordx8 s[4:11], s[0:1], 0
  s_load_dwordx8 s[64:71], s[0:1], 32
  s_cmp_ge_u32 s2, 256
  s_cbranch_scc1 B_done
  v_lshlrev_b32 v{vT16}, 4, v0
  v_readfirstlane_b32 s{sW}, v0
  v_lshlrev_b32 v2, 2, v0
  v_and_b32 v2, 0xc0, v2
  v_xor_b32 v2, v2, v{vT16}
  v_and_b32 v3, 0xf0, v0
  v_xor_b32 v3, v3, v{vT16}
  s_lshr_b32 s{sW}, s{sW}, 6
  s_mov_b32 s{rX+2}, {N*256}
  s_mov_b32 s{rX+3}, 0x20000""")
if opt["cw"]:
    A(f"""  s_cmp_lt_u32 s{sW}, 14
  s_cbranch_scc1 F_nocw
  s_getpc_b64 s[98:99]
F_pc:
  v_and_b32 v120, 127, v0
  v_lshlrev_b32 v120, 7, v120
  v_min_u32 v120, F_code_end-F_pc-4, v120
  global_load_dword v121, v120, s[98:99]
F_nocw:""")
movs(vD, 4, 0)
A(f"""  s_cmp_ge_u32 s2, 125
  s_cbranch_scc1 F_nopart
  s_mul_i32 s3, s2, 12800
  v_add_u32 v{vT}, s3, v{vT16}
  v_mov_b32 v{vT+1}, 800
  v_cmp_gt_u32 s[40:41], v{vT+1}, v0""")
movs(vD+4, 4, -1)
A(f"""  s_mov_b64 exec, s[40:41]
  s_waitcnt lgkmcnt(0)
  s_cbranch_execz F_noload
  global_load_dwordx4 v[{pD}:{pD+3}], v{vT}, s[{sDST}:{sDST+1}] nt
  global_load_dwordx4 v[{pS}:{pS+3}], v{vT}, s[{sSRC}:{sSRC+1}] nt
F_noload:
  s_mov_b64 exec, -1
  ds_write_b128 v{vT16}, v[{vD+4}:{vD+7}]
  ds_write_b128 v{vT16}, v[{vD+4}:{vD+7}] offset:16384
  ds_write_b128 v{vT16}, v[{vD}:{vD+3}] offset:32768
  s_mov_b64 s[{rX}:{rX+1}], s[{sX}:{sX+1}]
  s_waitcnt lgkmcnt(0)
  s_load_dword s{sEP}, s[{sWS}:{sWS+1}], 0
  s_barrier""")
ts(9)
if opt["xb"]: dma_x("F_nx0")
dma_w(L_WQ, sWQ)
consts()
A(f"""  s_mov_b64 exec, s[40:41]
  s_cbranch_execz F_placed
  s_movk_i32 s58, 21400
  v_mov_b32 v{vT+4}, 4
  s_movk_i32 s59, -49
  s_waitcnt vmcnt({4 if opt["xb"] else 3})""")
ts(10)
for i in range(4):
    A(f"  v_mul_u32_u24 v{pB+i}, s58, v{pD+i}")
for i in range(4):
    A(f"  v_lshrrev_b32 v{pB+i}, 20, v{pB+i}")
for i in range(4):
    A(f"  v_mad_i32_i24 v{pE+i}, v{pB+i}, s59, v{pD+i}")
    A(f"  v_lshlrev_b32 v{pB+i}, 2, v{pB+i}")
    A(f"  ds_add_rtn_u32 v{pR+i}, v{pB+i}, v{vT+4} offset:{P_CNT}")
A(f"  s_waitcnt vmcnt({3 if opt['xb'] else 2})")
if not opt["ql"] and not opt["xb"]: dma_x("F_nx0")
ts(11)
for i in range(4):
    A(f"  v_lshl_add_u32 v{pE+i}, v{pS+i}, 8, v{pE+i}")
A("  s_movk_i32 s58, 124")
A("  s_waitcnt lgkmcnt(0)")
A(f"  v_max3_u32 v{vT+5}, v{pR}, v{pR+1}, v{pR+2}")
A(f"  v_max_u32 v{vT+5}, v{vT+5}, v{pR+3}")
A(f"  v_cmp_le_u32 vcc, s58, v{vT+5}")
A(f"  s_cbranch_vccnz F_ovf") if False else A("  s_cmp_lg_u64 vcc, 0\n  s_cbranch_scc1 F_ovf")
A("F_ovfdone:")
for i in range(4):
    A(f"  v_add_u32 v{pR+i}, v{pR+i}, v{pB+i}")
    A(f"  v_and_b32 v{pR+i}, s58, v{pR+i}")
    A(f"  v_lshl_add_u32 v{pR+i}, v{pB+i}, 5, v{pR+i}")
    A(f"  ds_write_b32 v{pR+i}, v{pE+i}")
A(f"""F_placed:
  s_mov_b64 exec, -1
  v_mov_b32 v{vT+4}, {P_OCNT}
  s_waitcnt lgkmcnt(0)
  s_barrier
  {"s_memrealtime s[0:1]" if opt["ts"] else ""}
  ds_read_b32 v{pB}, v{vT+4}
  ds_read_b128 v[{pD}:{pD+3}], v119
  ds_read_b128 v[{pS}:{pS+3}], v119 offset:1024""")
tags()
for k in range(4):
    A(f"  s_add_u32 s{sTP+k}, s{sT+k}, 1")
A(f"""  s_lshl_b32 s3, s2, 7
  s_add_u32 s56, s{sWS}, s3
  s_addc_u32 s57, s{sWS+1}, 0
  s_add_u32 s58, s56, {8*CELLROW}
  s_addc_u32 s59, s57, 0
  s_waitcnt lgkmcnt(2)
  v_readfirstlane_b32 s99, v{pB}
  s_cmp_lg_u32 s99, 0
  s_cbranch_scc1 F_cnt
F_cntdone:
  s_waitcnt lgkmcnt(1)""")
for k in range(4):
    A(f"  v_add_u32 v{pD+k}, s{sTP+k}, v{pD+k}")
A(f"  global_store_dwordx4 v{cPO}, v[{pD}:{pD+3}], s[56:57] offset:{CELL0} sc1")
A("  s_waitcnt lgkmcnt(0)")
for k in range(4):
    A(f"  v_add_u32 v{pS+k}, s{sTP+k}, v{pS+k}")
A(f"  global_store_dwordx4 v{cPO}, v[{pS}:{pS+3}], s[58:59] offset:{CELL0} sc1")
ts(1)
if opt["ql"]:
    dma_x("F_nx0")
    zero_fill(vD)
    dma_w(L_WV, sWV)
    A(f"  s_mov_b32 s{sQL}, 1")
    A("  s_waitcnt lgkmcnt(0)\n  s_barrier")
    ts(2)
    A(f"""  s_mov_b64 exec, s[{sMC}:{sMC+1}]
  global_load_dwordx4 v[{vE}:{vE+3}], v127, s[{sWS}:{sWS+1}] offset:{CELL0} sc1
  s_branch F_wait""")
else:
    A(f"""  ds_write_b128 v119, v[{vD}:{vD+3}]
  ds_write_b128 v119, v[{vD}:{vD+3}] offset:1024
  ds_write_b128 v{vT16}, v[{vD}:{vD+3}] offset:32768
  ds_write_b128 v{vT16}, v[{vD}:{vD+3}] offset:49152""")
    A(f"  s_mov_b32 s{sQL}, 0")
    A(f"  s_waitcnt vmcnt(2) lgkmcnt(0)\n  s_barrier")
A(f"""  s_branch F_join
F_nopart:""")
A(f"""  s_waitcnt lgkmcnt(0)
  s_load_dword s{sEP}, s[{sWS}:{sWS+1}], 0
  s_mov_b64 s[{rX}:{rX+1}], s[{sX}:{sX+1}]""")
if opt["xn"]: dma_x("F_nx1")
dma_w(L_WQ, sWQ)
zero_fill(vD)
consts()
if not opt["xn"]:
    A("  s_waitcnt vmcnt(0)")
    ts(9)
    dma_x("F_nx1")
if opt["pf"] and not opt["pfl"]:
    assert NA % 1024 == 0
    A("  s_cmp_lt_u32 s2, 128\n  s_cbranch_scc1 F_pfx")
    prefetch(False, "F_pf0")
    A(f"  s_waitcnt vmcnt({NA//1024}) lgkmcnt(0)")
    A("  s_branch F_z\nF_pfx:")
A("  s_waitcnt vmcnt(0) lgkmcnt(0)")
A("F_z:")
A(f"  s_mov_b32 s{sQL}, 0")
tags()
A("  s_barrier")
if opt["pfp"] or (opt["pf"] and opt["pfl"]):
    A("  s_cmp_ge_u32 s2, 128\n  s_cbranch_scc1 F_late")
    if opt["pfp"]: prefetch(True, "F_pfq")
    A("  s_branch F_join\nF_late:")
    if opt["pf"] and opt["pfl"]:
        prefetch(False, "F_pf0")
ts(1)
A("F_join:")
ts(2)
dma_w(L_WV, sWV)
if opt["ua"]: upf(opt["ua"], 0, "F_ua")
if opt["pq"]: pf_issue(0, opt["pq"])
FA = 74; FB = 58
def q_compute(mid=None):
    for s in range(4):
        w_frag_reads(cWF, FA, s)
        if s:
            A(f"  v_xor_b32 v{vI+s-1}, {s*64}, v{cBF}")
            A(f"  ds_read_b128 v[{FB+4*s}:{FB+4*s+3}], v{vI+s-1}")
        else:
            A(f"  ds_read_b128 v[{FB}:{FB+3}], v{cBF}")
    for s in range(4):
        A(f"  s_waitcnt lgkmcnt({min(15,(3-s)*5)})")
        for b in range(2):
            d = vD + 4*b
            a = FA + (b*4+s)*4
            c = "0" if s == 0 else f"v[{d}:{d+3}]"
            A(f"  v_mfma_f32_16x16x32_bf16 v[{d}:{d+3}], v[{a}:{a+3}], v[{FB+4*s}:{FB+4*s+3}], {c}")
    if mid: mid()
    A(f"  s_mov_b64 exec, s[{sMQ}:{sMQ+1}]")
    A("  s_nop 6")
    for k in range(0, 8, 2):
        A(f"  v_pk_mul_f32 v[{vD+k}:{vD+k+1}], v[{vD+k}:{vD+k+1}], s[60:61] op_sel:[0,1] op_sel_hi:[1,1]")
    for k in range(4):
        A(f"  v_cvt_pk_bf16_f32 v{FB+k}, v{vD+2*k}, v{vD+2*k+1}")
    A(f"  ds_write_b128 v{cQD}, v[{FB}:{FB+3}] offset:{NS+512}")
    A("  s_mov_b64 exec, -1")
    for k in range(0, 8, 2):
        A(f"  v_mov_b64 v[{vD+k}:{vD+k+1}], 0")

def first_poll():
    if opt["wt"]:
        A(f"""F_wt:
  s_memrealtime s[98:99]
  s_waitcnt lgkmcnt(0)
  s_sub_u32 s98, s98, s80
  s_cmp_lt_u32 s98, {opt["wt"]}
  s_cbranch_scc1 F_wt""")
    if opt["pre"]:
        A(f"  s_cmp_lt_u32 s2, 125\n  s_cbranch_scc1 F_nopre\n  s_sleep {opt['pre']}\nF_nopre:")
    if opt["ub"]: upf(opt["ub"], opt["ua"], "F_ub")
    A(f"""  s_mov_b64 exec, s[{sMC}:{sMC+1}]
  global_load_dwordx4 v[{vE}:{vE+3}], v127, s[{sWS}:{sWS+1}] offset:{CELL0} sc1""")

if opt["noq"]:
    movs(vD, 8, 0)
    if opt["noq"] == 1: A(f"""  s_mov_b64 exec, 0xff
F_pre:
  global_load_dwordx4 v[{vE}:{vE+3}], v127, s[{sWS}:{sWS+1}] offset:{CELL0} sc1
  s_waitcnt vmcnt(0)
  v_xor_b32 v{vT}, s{sT}, v{vE}
  v_cmp_le_u32 vcc, s54, v{vT}
  s_cmp_eq_u64 vcc, 0
  s_cbranch_scc1 F_pre2
  s_sleep 4
  s_branch F_pre
F_pre2:""")
    first_poll()
else:
    q_compute(first_poll)
A("F_wait:")
ts(3)
PL = f"  global_load_dwordx4 v[{vE}:{vE+3}], v127, s[{sWS}:{sWS+1}] offset:{CELL0} sc1"
CHK = f"""  v_xor_b32 v{vT}, s{sT}, v{vE}
  v_bitop3_b32 v{vT}, v{vE+1}, s{sT+1}, v{vT} bitop3:0xbe
  v_bitop3_b32 v{vT}, v{vE+2}, s{sT+2}, v{vT} bitop3:0xbe
  v_bitop3_b32 v{vT}, v{vE+3}, s{sT+3}, v{vT} bitop3:0xbe
  v_cmp_le_u32 vcc, s54, v{vT}
  s_mov_b64 exec, vcc"""
if not opt["pp"]:
    A(f"""  s_mov_b64 exec, s[{sMC}:{sMC+1}]
  s_branch F_polltest
F_poll:
  s_sleep {opt["slp"]}
  s_sub_u32 s60, s60, 1
  s_cbranch_scc1 F_giveup
{PL}
F_polltest:
  s_waitcnt vmcnt(0)
{CHK}
  s_cbranch_execnz F_poll
F_polled:
  s_mov_b64 exec, -1""")
else:
    A(f"""  s_mov_b64 exec, s[{sMC}:{sMC+1}]
  s_waitcnt vmcnt(0)
{CHK}
  s_cbranch_execz F_polled
{PL}
F_poll:
  s_sleep {opt["pp"]}
  s_sub_u32 s60, s60, 1
  s_cbranch_scc1 F_giveup
{PL}
  s_waitcnt vmcnt(1)
{CHK}
  s_cbranch_execnz F_poll
F_polled:
  s_mov_b64 exec, -1""")
if opt["pk"]: pf_issue(opt["pq"], opt["pk"])
ts(4)
A("B_build:")
for i in range(4):
    A(f"  v_lshlrev_b32_sdwa v{vP+i}, 2, v{vE+i} dst_sel:DWORD dst_unused:UNUSED_PAD src0_sel:DWORD src1_sel:BYTE_0")
A(f"  v_max3_u32 v{vT}, v{vP}, v{vP+1}, v{vP+2}")
A(f"  v_max_u32 v{vT}, v{vT}, v{vP+3}")
A(f"  v_cmp_lt_u32 vcc, 0xf8, v{vT}")
A(f"  s_cmp_lg_u64 vcc, 0\n  s_cbranch_scc1 B_mark\nB_nomark:")
for i in range(4):
    A(f"  v_cmp_ne_u32 s[{40+2*i}:{41+2*i}], 0, v{vP+i}")
for i in range(4):
    A(f"  s_mov_b64 exec, s[{40+2*i}:{41+2*i}]")
    A(f"  ds_add_rtn_u32 v{vR+i}, v{vP+i}, v{cFOUR} offset:{L_CNT}")
A("  s_mov_b64 exec, -1")
for i in range(4):
    A(f"  v_bitop3_b32 v{vV+i}, v{vE+i}, s55, v{cPAD} bitop3:0x6a")
A(f"""  s_waitcnt lgkmcnt(0)
  s_barrier
  ds_read_b32 v{vT+1}, v{cL4} offset:{L_CNT}
  ds_read_b32 v{vT+7}, v{cFOUR} offset:{L_FLAGS+12}
  s_cmp_lg_u32 s{sQL}, 0
  s_cbranch_scc1 B_lateq
B_lateq_ret:
  s_lshl_b32 s58, s{sW}, 2
  s_mov_b32 s59, s{sW}
  s_waitcnt lgkmcnt(1)
  v_add_u32 v{vT+1}, 12, v{vT+1}
  v_lshrrev_b32 v{vT+1}, 4, v{vT+1}        ; nq
  s_nop 1
  v_add_u32_dpp v{vT+2}, v{vT+1}, v{vT+1} row_shr:1 row_mask:0xf bank_mask:0xf bound_ctrl:0
  s_nop 1
  v_add_u32_dpp v{vT+2}, v{vT+2}, v{vT+2} row_shr:2 row_mask:0xf bank_mask:0xf
  s_nop 1
  v_add_u32_dpp v{vT+2}, v{vT+2}, v{vT+2} row_shr:4 row_mask:0xf bank_mask:0xf
  s_nop 1
  v_add_u32_dpp v{vT+2}, v{vT+2}, v{vT+2} row_shr:8 row_mask:0xf bank_mask:0xf
  s_nop 1
  v_add_u32_dpp v{vT+2}, v{vT+2}, v{vT+2} row_bcast:15 row_mask:0xa bank_mask:0xf
  s_nop 1
  v_add_u32_dpp v{vT+2}, v{vT+2}, v{vT+2} row_bcast:31 row_mask:0xc bank_mask:0xf
  s_nop 0
  v_sub_u32 v{vT}, v{vT+2}, v{vT+1}        ; qstart
  v_readlane_b32 s{sP}, v{vT+2}, 63        ; T4
  v_lshlrev_b32 v{vT+2}, 4, v{vT}          ; qstart*16""")
for i in range(4):
    A(f"  ds_bpermute_b32 v{vP+i}, v{vP+i}, v{vT+2}")
A(f"""  v_lshl_add_u32 v{vT}, v{vT}, 2, s58
  s_add_u32 s{sP}, s{sP}, 31
  s_lshr_b32 s{sP}, s{sP}, 5
B_qn:
  v_cmp_lt_u32 vcc, s59, v{vT+1}
  s_add_u32 s59, s59, 16
  v_cmp_lt_u32 s[56:57], s59, v{vT+1}
  s_mov_b64 exec, vcc
  ds_write_b32 v{vT}, v{cNODE} offset:{L_QN}
  s_mov_b64 exec, -1
  s_cmp_lg_u64 s[56:57], 0
  s_cbranch_scc1 B_qnmore
  v_cmp_lt_u32 vcc, s{sP}, v{vT+1}
  s_mov_b32 s63, s62
  s_cmp_lg_u64 vcc, 0
  s_cbranch_scc1 B_mode
B_modedone:
  v_mad_u32_u24 v{vLB}, v{cS16}, s{sP}, v{cSL}
  v_mul_u32_u24 v{vQB}, s{sP}, v{cS16}
  v_mad_u32_u24 v{vT}, v{cCMA}, s{sP}, v{cCMB}
  v_lshrrev_b32 v{vQB}, 2, v{vQB}
  s_waitcnt lgkmcnt(0)""")
for i in range(4):
    A(f"  v_add_u32 v{vR+i}, v{vR+i}, v{vP+i}")
for i in range(4):
    A(f"  s_mov_b64 exec, s[{40+2*i}:{41+2*i}]")
    A(f"  ds_write_b32 v{vR+i}, v{vV+i} offset:{L_LIST}")
A(f"""  s_mov_b64 exec, -1
  v_readfirstlane_b32 s56, v{vT+7}
  s_cmp_lg_u32 s56, 0
  s_cbranch_scc1 B_flags
B_noflags:""")
A(f"""  s_add_u32 s{sU}, s{sP}, 1
  s_lshr_b32 s{sU}, s{sU}, 1
  s_and_b32 s{sODD}, s{sP}, 1
  s_mul_i32 s57, s{sODD}, 3                ; units-left value at which the unit two ahead has a single pair
  s_cmp_le_u32 s{sP}, 5
  s_waitcnt lgkmcnt(0)
  s_barrier""")
ts(5)
if opt["ts"]: A("  s_memtime s[76:77]")
A(f"""  ds_read2_b32 v[{vI}:{vI+1}], v{vLB} offset0:0 offset1:4
  v_add_u32 v{vQB}, {L_QN}, v{vQB}
  ds_read2_b32 v[{vT+4}:{vT+5}], v{vLB} offset0:8 offset1:12
  ds_read2_b32 v[{vQA[0]}:{vQA[0]+1}], v{vQB} offset0:0 offset1:1
  ds_read2_b32 v[{vT+2}:{vT+3}], v{vT} offset0:0 offset1:1
  s_cbranch_scc1 B_small""")

def loads_a(x, i):
    return (f"  v_xor_b32 v{i}, v{i}, v{cXC}\n"
            f"  buffer_load_dwordx4 v[{x}:{x+3}], v{i}, s[{rX}:{rX+3}], 0 offen\n"
            f"  buffer_load_dwordx4 v[{x+8}:{x+11}], v{i}, s[{rX}:{rX+3}], 0 offen offset:128")
def loads_b(x, i):
    return (f"  v_xor_b32 v{i}, v{i}, v{cXC}\n"
            f"  buffer_load_dwordx4 v[{x+4}:{x+7}], v{i}, s[{rX}:{rX+3}], 0 offen\n"
            f"  buffer_load_dwordx4 v[{x+12}:{x+15}], v{i}, s[{rX}:{rX+3}], 0 offen offset:128")
def q_reads(q):
    A(f"  v_add_u32 v{q}, v{q}, v{cLQ}")
    A(f"  v_add_u32 v{q+1}, v{q+1}, v{cLQ}")
    A(f"  ds_read_b128 v[{vQ}:{vQ+3}], v{q}")
    A(f"  ds_read_b128 v[{vQ+4}:{vQ+7}], v{q+1}")
    A(f"  ds_read_b128 v[{vQ+8}:{vQ+11}], v{q} offset:128")
    A(f"  ds_read_b128 v[{vQ+12}:{vQ+15}], v{q+1} offset:128")

A("B_start:\n  s_waitcnt lgkmcnt(3)")
A(loads_a(vX[0], vI)); A(loads_b(vX[0], vI+1))
A("  s_waitcnt lgkmcnt(2)")
A(loads_a(vX[1], vT+4)); A(loads_b(vX[1], vT+5))
A("B_started:")
A(f"  ds_read2_b32 v[{vI}:{vI+1}], v{vLB} offset0:16 offset1:20")
A("  s_waitcnt lgkmcnt(1)")
A(f"  v_cmp_ne_u32 s[{sCM}:{sCM+1}], v{vT+2}, v{vT+3}")
q_reads(vQA[0])
A(f"""  s_bitset0_b32 s{sCM}, 0
  s_bitset0_b32 s{sCM+1}, 0
  s_or_b32 s34, s{sCM}, s{sCM+1}""")

ool = []
def flush_block(lbl, qa, bit):
    s = f"""{lbl}:
  s_bitcmp1_b32 s{sCM}, {bit}
  s_cselect_b32 exec_lo, s48, 0
  s_bitcmp1_b32 s{sCM+1}, {bit}
  s_cselect_b32 exec_hi, s49, 0
  v_add_u32 v{vT+4}, v{qa}, v{cACQ}
  s_cmp_ge_u32 s63, 2
  s_cbranch_scc1 {lbl}_at
  s_nop 2
  ds_write_b128 v{vT+4}, v[{vD}:{vD+3}]
  ds_write_b128 v{vT+4}, v[{vD+4}:{vD+7}] offset:256
{lbl}_z:
  s_nop 1
"""
    for k in range(0, 8, 2):
        s += f"  v_mov_b64 v[{vD+k}:{vD+k+1}], 0\n"
    s += "  s_mov_b64 exec, -1\n"
    tail = f"{lbl}_at:\n  s_nop 2\n"
    for k in range(8):
        tail += f"  ds_add_f32 v{vT+4}, v{vD+k} offset:{(k//4)*256 + (k%4)*4}\n"
    tail += f"  s_branch {lbl}_z\n"
    return s, tail

def smf(a, x):
    return (f"  v_smfmac_f32_16x16x64_bf16 v[{vD}:{vD+3}], v[{a}:{a+3}], v[{x}:{x+7}], v{cIDX}\n"
            f"  v_smfmac_f32_16x16x64_bf16 v[{vD+4}:{vD+7}], v[{a}:{a+3}], v[{x+8}:{x+15}], v{cIDX}")

def abuild(a, r, rowmask):
    return (f"  v_mov_b32_dpp v{a}, v{r} quad_perm:[0,1,2,3] row_mask:{rowmask:#x} bank_mask:0x5\n"
            f"  v_mov_b32_dpp v{a+1}, v{r} row_half_mirror row_mask:{rowmask:#x} bank_mask:0xa\n"
            f"  v_mov_b32_dpp v{a+2}, v{r} row_half_mirror row_mask:{rowmask:#x} bank_mask:0x5\n"
            f"  v_mov_b32_dpp v{a+3}, v{r} quad_perm:[0,1,2,3] row_mask:{rowmask:#x} bank_mask:0xa")

SH = f"  s_lshr_b32 s34, s34, 2\n  s_lshr_b32 s{sCM}, s{sCM}, 2\n  s_lshr_b32 s{sCM+1}, s{sCM+1}, 2"
def body(n):
    x = vX[n]; xn = vX[(n+2) % 3]
    qa = vQA[n]; qn = vQA[(n+1) % 3]; qp = vQA[(n+2) % 3]
    r = vT + 2
    pa, pb = vT, vT + 1
    A(f"B_u{n}:")
    A(f"  s_bitcmp1_b32 s34, 0")
    A(f"  s_cbranch_scc1 B_fa{n}")
    A(f"B_fa{n}_ret:")
    s, t = flush_block(f"B_fa{n}", qp + 1, 0)
    ool.append(s + f"  s_branch B_fa{n}_ret\n" + t)
    A(f"  ds_read2_b32 v[{qn}:{qn+1}], v{vQB} offset0:{2+2*n} offset1:{3+2*n}")
    A(f"  s_cmp_le_u32 s{sU}, 2")
    A(f"  s_cbranch_scc1 B_nl{n}")
    A(f"  s_cmp_eq_u32 s{sU}, s57")
    A(f"  s_waitcnt lgkmcnt(5)")
    A(loads_a(xn, vI))
    A(f"  s_cbranch_scc1 B_skip{n}")
    A(loads_b(xn, vI+1))
    A(f"  ds_read2_b32 v[{vI}:{vI+1}], v{vLB} offset0:{24+8*n} offset1:{28+8*n}")
    A(f"  s_waitcnt vmcnt(8) lgkmcnt(2)")
    A(f"B_go{n}:")
    ool.append(f"""B_skip{n}:
  s_waitcnt vmcnt(6) lgkmcnt(0)
  s_branch B_go{n}
B_nl{n}:
  {"s_setprio 0" if opt["prio"] else ""}
  s_cmp_eq_u32 s{sU}, 1
  s_cbranch_scc1 B_nl{n}_last
  s_waitcnt vmcnt(2) lgkmcnt(0)
  s_branch B_go{n}
B_nl{n}_last:
  s_lshl_b32 s56, s{sODD}, 1
  s_or_b32 s34, s34, s56
  s_waitcnt vmcnt(0) lgkmcnt(0)
  s_branch B_go{n}
""")
    order = [(0, 4), (1, 5), (2, 6), (3, 7), (8, 12), (9, 13), (10, 14), (11, 15)]
    for k, (ia, ib) in enumerate(order):
        ca = "0" if k == 0 else f"v{pa}"
        cb = "0" if k == 0 else f"v{pb}"
        A(f"  v_dot2_f32_bf16 v{pa}, v{x+ia}, v{vQ+ia}, {ca}")
        A(f"  v_dot2_f32_bf16 v{pb}, v{x+ib}, v{vQ+ib}, {cb}")
    A("  s_waitcnt lgkmcnt(1)")
    q_reads(qn)
    A(f"  v_permlane32_swap_b32 v{pa}, v{pb}")
    if n == 2:
        A(f"  v_add_u32 v{vLB}, 96, v{vLB}")
        A(f"  v_add_u32 v{vQB}, 24, v{vQB}")
    else:
        A("  s_nop 1")
    A(f"  v_permlane16_swap_b32 v{pa}, v{pb}")
    A(f"  s_nop 1")
    A(f"  v_add_f32_dpp v{r}, v{pa}, v{pa} row_half_mirror row_mask:0xf bank_mask:0x5")
    A(f"  v_add_f32_dpp v{r}, v{pb}, v{pb} row_half_mirror row_mask:0xf bank_mask:0xa")
    A(f"  s_nop 1")
    A(f"  v_add_f32_dpp v{r}, v{r}, v{r} quad_perm:[1,0,3,2] row_mask:0xf bank_mask:0xf")
    A(f"  s_nop 1")
    A(f"  v_add_f32_dpp v{r}, v{r}, v{r} quad_perm:[2,3,0,1] row_mask:0xf bank_mask:0xf")
    A(f"  v_exp_f32 v{r}, v{r}")
    A(f"  s_nop 0")
    A(f"  v_add_f32 v{r}, 1.0, v{r}")
    A(f"  v_rcp_f32 v{r}, v{r}")
    A(f"  s_bitcmp1_b32 s34, 1")
    A(f"  v_cvt_pk_bf16_f32 v{r}, v{r}, 0")
    A(f"  s_cbranch_scc1 B_sp{n}")
    A(f"  s_sub_u32 s{sU}, s{sU}, 1")
    A(abuild(vA, r, 0xf))
    A(SH)
    A(smf(vA, x))
    A(f"B_sp{n}_ret:")
    A(f"  s_cmp_eq_u32 s{sU}, 0")
    A(f"  s_cbranch_scc1 B_exit{n}")
    if opt["prio"] == 1 and n == 2:
        A(f"  s_setprio 1")
    if opt["prio"] == 2:
        A(f"""  s_cmp_gt_u32 s{sU}, 5
  s_cbranch_scc1 B_pp{n}
  s_setprio 2
  s_cmp_gt_u32 s{sU}, 3
  s_cbranch_scc1 B_pp{n}
  s_setprio 1
B_pp{n}:""")
    if opt["prio"] == 3:
        A(f"""  s_cmp_gt_u32 s{sU}, 5
  s_cbranch_scc1 B_pp{n}
  s_setprio 2
  s_cmp_gt_u32 s{sU}, 4
  s_cbranch_scc1 B_pp{n}
  s_setprio 1
  s_cmp_gt_u32 s{sU}, 3
  s_cbranch_scc1 B_pp{n}
  s_setprio 0
B_pp{n}:""")
    s, t = flush_block(f"B_sp{n}_f", qa, 1)
    blk = (f"B_sp{n}:\n  s_sub_u32 s{sU}, s{sU}, 1\n" + abuild(vAa, r, 0x3) + "\n" + abuild(vAb, r, 0xc) + "\n"
           + f"  s_add_u32 s56, s{sU}, 1\n  s_cmp_eq_u32 s56, s{sODD}\n" + smf(vAa, x) + f"\n  s_cbranch_scc1 B_odd{n}\n  s_nop 0\n" + s
           + SH + "\n" + smf(vAb, x) + f"\n  s_branch B_sp{n}_ret\n" + t
           + f"B_odd{n}:\n  v_add_u32 v{vT+5}, v{qa}, v{cACQ}\n  s_branch B_final_flush\n"
           + f"B_exit{n}:\n  v_add_u32 v{vT+5}, v{qa+1}, v{cACQ}\n  s_branch B_final_flush\n")
    ool.append(blk)

if opt["prio"]: A("  s_setprio 3")
body(0)
body(1)
body(2)
A("  s_branch B_u0")
A("B_final_flush:")
ts(6)
FE = 58
def wv_frags(lbl):
    A(f"""  s_cmp_gt_u32 s{sW}, 7
  s_cbranch_scc1 {lbl}
  s_and_b32 s56, s{sW}, 1
  s_lshl_b32 s56, s56, 7
  s_xor_b32 s56, s56, s{sT64}
  v_xor_b32 v{vT}, s56, v{cWF}
  v_add_u32 v{vT}, {L_WV - L_WQ}, v{vT}
  v_xor_b32 v{vT+1}, 64, v{vT}""")
    for tp in range(2):
        for s in range(4):
            w_frag_reads(vT + tp, FE + 32*tp, s)
    A(f"{lbl}:")
wv_frags("B_nofr")
RT = 22
A(f"""  s_waitcnt lgkmcnt(0)
  s_barrier
  {"s_memrealtime s[22:23]" if opt["ts"] == 2 else ""}
  s_mov_b64 exec, s[48:49]
  s_cmp_lg_u32 s63, 0
  s_cbranch_scc1 B_final_special
B_final_rmw:
  ds_read_b128 v[{RT}:{RT+3}], v{vT+5}
  ds_read_b128 v[{RT+4}:{RT+7}], v{vT+5} offset:256
  s_waitcnt lgkmcnt(1)""")
for k in range(0, 4, 2):
    A(f"  v_pk_add_f32 v[{vD+k}:{vD+k+1}], v[{vD+k}:{vD+k+1}], v[{RT+k}:{RT+k+1}]")
A(f"  ds_write_b128 v{vT+5}, v[{vD}:{vD+3}]")
A("  s_waitcnt lgkmcnt(1)")
for k in range(4, 8, 2):
    A(f"  v_pk_add_f32 v[{vD+k}:{vD+k+1}], v[{vD+k}:{vD+k+1}], v[{RT+k}:{RT+k+1}]")
A(f"  ds_write_b128 v{vT+5}, v[{vD+4}:{vD+7}] offset:256")
A(f"""  s_cmp_eq_u32 s63, 1
  s_cbranch_scc1 B_final_phase2
B_final_done:
  s_mov_b64 exec, -1
B_round_fin:
  s_or_b32 s56, s50, s51
  s_or_b32 s57, s52, s53
  s_or_b32 s56, s56, s57
  s_cbranch_scc1 B_more
  s_mov_b64 s[{rOUT}:{rOUT+1}], s[{sOUT}:{sOUT+1}]
  s_mov_b32 s{rOUT+2}, {N*256}
  s_mov_b32 s{rOUT+3}, 0x20000
  s_mul_i32 s3, s2, {NPB*256}
  s_and_b32 s56, s{sW}, 1
  s_lshl_b32 s56, s56, 7
  s_add_u32 s3, s3, s56
  s_cmp_gt_u32 s{sW}, 7
  s_waitcnt lgkmcnt(0)
  {"s_memrealtime s[0:1]" if opt["ts"] == 2 else ""}
  s_barrier""")
ts(7)
if opt["ts"]: A("  s_memtime s[78:79]")
A("  s_cbranch_scc1 B_end")
AC = 22
DO = [4, 8, 12, 54]
for s in range(4):
    A(f"  ds_read_b128 v[{AC+8*s}:{AC+8*s+3}], v{cAR} offset:{NS+s*128}")
    A(f"  ds_read_b128 v[{AC+8*s+4}:{AC+8*s+7}], v{cAR} offset:{NS+s*128+16}")
for s in range(4):
    A(f"  s_waitcnt lgkmcnt({6-2*s})")
    for k in range(4):
        A(f"  v_cvt_pk_bf16_f32 v{AC+4*s+k}, v{AC+8*s+2*k}, v{AC+8*s+2*k+1}")
    A("  s_nop 1")
    for tp in range(2):
        for b in range(2):
            d = DO[2*tp+b]
            a = FE + 32*tp + 4*(b*4+s)
            c = "0" if s == 0 else f"v[{d}:{d+3}]"
            A(f"  v_mfma_f32_16x16x32_bf16 v[{d}:{d+3}], v[{a}:{a+3}], v[{AC+4*s}:{AC+4*s+3}], {c}")
if opt["ts"] == 2: ts(1)
A(f"  s_or_b32 s56, s2, s{sW}")
A("  s_nop 4")
for tp in range(2):
    if tp: A("  s_nop 0")
    for k in range(4):
        d = DO[2*tp + k//2] + 2*(k % 2)
        A(f"  v_cvt_pk_bf16_f32 v{38+4*tp+k}, v{d}, v{d+1}")
    A(f"  ds_write_b128 v{cSW}, v[{38+4*tp}:{41+4*tp}] offset:{64*tp}")
A(f"""  ds_read_b128 v[22:25], v{cSR}
  ds_read_b128 v[26:29], v{cSR} offset:1152
  s_waitcnt lgkmcnt(1)
  buffer_store_dwordx4 v[22:25], v{cOUT}, s[{rOUT}:{rOUT+3}], s3 offen{OF}
  s_mov_b64 exec, s[{sMO}:{sMO+1}]
  s_cbranch_execz B_nost2
  s_waitcnt lgkmcnt(0)
  buffer_store_dwordx4 v[26:29], v{cOUT}, s[{rOUT}:{rOUT+3}], s3 offen offset:2048{OF}
B_nost2:
  {"s_memrealtime s[84:85]" if opt["ts"] == 2 else ""}
  s_cbranch_scc1 B_end
  v_mov_b32 v4, 0
  v_mov_b32 v5, s{sEP}
  s_mov_b64 exec, 1
  global_store_dword v4, v5, s[{sWS}:{sWS+1}]
B_end:""")
if opt["ts"]:
    A("  s_waitcnt vmcnt(0)")
    ts(8)
    A("  s_mov_b64 exec, -1")
    ts_store(range(13))
A("B_done:\n  s_endpgm")

for blk in ool:
    A(blk)
A(f"""B_small:
  s_waitcnt lgkmcnt(0)
  s_cmp_eq_u32 s{sP}, 0
  s_cbranch_scc1 B_empty""")
for xb in vX:
    movs(xb+4, 4, 0)
    movs(xb+12, 4, 0)
A(f"  s_cmp_ge_u32 s{sP}, 4\n  s_cbranch_scc1 B_start")
A(loads_a(vX[0], vI))
A(f"  s_cmp_eq_u32 s{sP}, 1\n  s_cbranch_scc1 B_started")
A(loads_b(vX[0], vI+1))
A(f"  s_cmp_eq_u32 s{sP}, 2\n  s_cbranch_scc1 B_started")
A(loads_a(vX[1], vT+4))
A(f"""  s_branch B_started
B_empty:
  s_barrier""")
wv_frags("B_nofr2")
A("  s_branch B_round_fin")
A("B_lateq:")
q_compute()
A(f"""  s_mov_b32 s{sQL}, 0
  s_branch B_lateq_ret
B_flags:
  s_cmp_lg_u32 s62, 0
  s_cbranch_scc1 B_noflags
  v_mov_b32 v{vT+4}, {L_FLAGS}
  ds_read_b128 v[{vT+4}:{vT+7}], v{vT+4}
  s_waitcnt lgkmcnt(0)
  v_readfirstlane_b32 s53, v{vT+7}
  v_readfirstlane_b32 s50, v{vT+4}
  v_readfirstlane_b32 s51, v{vT+5}
  v_readfirstlane_b32 s52, v{vT+6}
  s_bitcmp1_b32 s53, 31
  s_cbranch_scc1 B_raw
  s_branch B_noflags""")
A(f"""B_qnmore:
  v_add_u32 v{vT}, 64, v{vT}
  s_branch B_qn
B_mode:
  s_max_u32 s{sP}, s{sP}, 13               ; short lists: longer streams instead of split nodes
  v_cvt_f32_u32 v{vT+4}, s{sP}
  v_lshrrev_b32 v{vT+5}, 4, v{vT+2}        ; qstart
  v_rcp_f32 v{vT+4}, v{vT+4}
  v_add_u32 v{vT+6}, v{vT+5}, v{vT+1}      ; qend
  v_cvt_f32_u32 v{vT+5}, v{vT+5}
  v_cvt_f32_u32 v{vT+6}, v{vT+6}
  v_add_f32 v{vT+5}, 0.5, v{vT+5}
  v_add_f32 v{vT+6}, 0.5, v{vT+6}
  v_mul_f32 v{vT+5}, v{vT+5}, v{vT+4}
  v_mul_f32 v{vT+6}, v{vT+6}, v{vT+4}
  v_cvt_u32_f32 v{vT+5}, v{vT+5}
  v_cvt_u32_f32 v{vT+6}, v{vT+6}
  v_sub_u32 v{vT+5}, v{vT+6}, v{vT+5}
  v_cmp_lt_u32 vcc, 1, v{vT+5}
  v_cmp_lt_u32 s[58:59], 2, v{vT+5}
  s_cmp_lg_u64 vcc, 0
  s_cselect_b32 s56, 1, 0
  s_max_u32 s63, s63, s56
  s_cmp_lg_u64 s[58:59], 0
  s_cselect_b32 s56, 2, 0
  s_max_u32 s63, s63, s56
  s_branch B_modedone
B_final_phase2:
  s_waitcnt lgkmcnt(0)
  s_barrier
  s_mov_b32 exec_lo, 0
  s_mov_b32 exec_hi, s49
  s_mov_b32 s63, 0
  s_branch B_final_rmw
B_final_special:
  s_cmp_ge_u32 s63, 2
  s_cbranch_scc1 B_final_atomic
  s_mov_b32 exec_hi, 0
  s_branch B_final_rmw
B_final_atomic:
  v_cmp_le_u32 vcc, {NS}, v{vT+5}
  s_and_b64 exec, exec, vcc""")
for k in range(8):
    A(f"  ds_add_f32 v{vT+5}, v{vD+k} offset:{(k//4)*256 + (k%4)*4}")
A("  s_branch B_final_done")
A(f"""B_mark:
  s_mov_b64 exec, vcc
  v_lshrrev_b32 v{vT}, 3, v0
  v_mov_b32 v{vT+1}, 1
  v_lshlrev_b32 v{vT+1}, v{vT}, v{vT+1}
  v_lshrrev_b32 v{vT}, 5, v{vT}
  v_lshlrev_b32 v{vT}, 2, v{vT}
  ds_or_b32 v{vT}, v{vT+1} offset:{L_FLAGS}
  ds_write_b32 v{cFOUR}, v{cFOUR} offset:{L_FLAGS+12}
  s_mov_b64 exec, -1""")
for i in range(4):
    A(f"  v_cmp_gt_u32 vcc, 0xfc, v{vP+i}\n  s_nop 1\n  v_cndmask_b32 v{vP+i}, 0, v{vP+i}, vcc")
A("  s_branch B_nomark")
def ovf_srd():
    A(f"""  s_add_u32 s{rOVF}, s{sWS}, {WS_OVF:#x}
  s_addc_u32 s{rOVF+1}, s{sWS+1}, 0
  s_mov_b32 s{rOVF+2}, {OVFCNT_REL + NCH*4}
  s_mov_b32 s{rOVF+3}, 0x20000""")
A("F_ovf:")
ovf_srd()
A(f"""  v_mov_b32 v{vT+5}, {P_OCNT}
  v_mov_b32 v{vT+6}, 62
  s_mul_i32 s3, s2, 12800""")
for i in range(4):
    A(f"""  v_cmp_le_u32 vcc, s58, v{pR+i}
  v_min_u32 v{pR+i}, s58, v{pR+i}
  s_mov_b64 exec, vcc
  s_cbranch_execz F_ov{i}
  ds_add_rtn_u32 v{vT+7}, v{vT+5}, v{vT+4}
  v_lshl_or_b32 v{pE+i}, v{pS+i}, 14, v{pD+i}
  s_waitcnt lgkmcnt(0)
  buffer_store_dword v{pE+i}, v{vT+7}, s[{rOVF}:{rOVF+3}], s3 offen sc1
  s_nop 0
  v_mov_b32 v{pE+i}, v{vT+6}
F_ov{i}:
  s_mov_b64 exec, s[40:41]""")
A(f"""  s_waitcnt vmcnt(0)
  s_branch F_ovfdone
F_cnt:
  s_cmp_lg_u32 s{sW}, 0
  s_cbranch_scc1 F_cnt2""")
ovf_srd()
A(f"""  s_lshl_b32 s99, s2, 2
  s_add_u32 s99, s99, {OVFCNT_REL:#x}
  v_mov_b32 v{pB+2}, 0
  v_lshrrev_b32 v{pB}, 2, v{pB}
  s_mov_b64 exec, 1
  buffer_store_dword v{pB}, v{pB+2}, s[{rOVF}:{rOVF+3}], s99 offen sc1
  s_mov_b64 exec, -1
  s_waitcnt vmcnt(0)
F_cnt2:
  s_barrier
  s_branch F_cntdone
F_giveup:
  s_waitcnt vmcnt(0)
  s_mov_b64 exec, -1
  v_mov_b32 v{vT}, {L_FLAGS+12}
  v_bfrev_b32 v{vT+1}, 1
  ds_or_b32 v{vT}, v{vT+1}
  ds_write_b32 v{cFOUR}, v{cFOUR} offset:{L_FLAGS+12}""")
movs(vE, 4, 0)
A(f"""  s_branch F_polled
B_raw:
  s_mov_b32 s50, -1
  s_mov_b32 s51, -1
  s_mov_b32 s52, -1
  s_mov_b32 s53, 0x1fffffff
  s_mov_b32 s62, 3
B_more:
  s_waitcnt vmcnt(0) lgkmcnt(0)
  s_barrier
  s_ff1_i32_b32 s56, s50
  s_cmp_lg_u32 s50, 0
  s_cbranch_scc0 B_m1
  s_bitset0_b32 s50, s56
  s_branch B_mdone
B_m1:
  s_ff1_i32_b32 s56, s51
  s_cmp_lg_u32 s51, 0
  s_cbranch_scc0 B_m2
  s_bitset0_b32 s51, s56
  s_add_u32 s56, s56, 32
  s_branch B_mdone
B_m2:
  s_ff1_i32_b32 s56, s52
  s_cmp_lg_u32 s52, 0
  s_cbranch_scc0 B_m3
  s_bitset0_b32 s52, s56
  s_add_u32 s56, s56, 64
  s_branch B_mdone
B_m3:
  s_ff1_i32_b32 s56, s53
  s_bitset0_b32 s53, s56
  s_add_u32 s56, s56, 96
B_mdone:
  s_mul_i32 s57, s56, 12800
  s_cmp_eq_u32 s62, 3
  s_cbranch_scc1 B_mraw
  s_mov_b32 s62, 2""")
ovf_srd()
A(f"""  s_lshl_b32 s58, s56, 2
  s_add_u32 s58, s58, {OVFCNT_REL:#x}
  v_mov_b32 v{vT}, 0
  buffer_load_dword v{vT+1}, v{vT}, s[{rOVF}:{rOVF+3}], s58 offen sc1
  buffer_load_dwordx4 v[{vE}:{vE+3}], v{vT16}, s[{rOVF}:{rOVF+3}], s57 offen sc1
  s_waitcnt vmcnt(0)
  v_readfirstlane_b32 s60, v{vT+1}
  s_branch B_mgot
B_mraw:
  s_mov_b64 s[{rOVF}:{rOVF+1}], s[{sDST}:{sDST+1}]
  s_mov_b32 s{rOVF+2}, 1600000
  s_mov_b32 s{rOVF+3}, 0x20000
  buffer_load_dwordx4 v[{vE}:{vE+3}], v{vT16}, s[{rOVF}:{rOVF+3}], s57 offen
  s_waitcnt vmcnt(0)
  s_mov_b64 s[{rOVF}:{rOVF+1}], s[{sSRC}:{sSRC+1}]
  buffer_load_dwordx4 v[{vR}:{vR+3}], v{vT16}, s[{rOVF}:{rOVF+3}], s57 offen
  s_movk_i32 s60, {CH}
  s_waitcnt vmcnt(0)""")
for i in range(4):
    A(f"  v_lshl_or_b32 v{vE+i}, v{vR+i}, 14, v{vE+i}")
A("B_mgot:")
movs(vD, 8, 0)
A(f"""  v_cmp_gt_u32 vcc, 16, v0
  s_mov_b64 exec, vcc
  ds_write_b128 v{vT16}, v[{vD}:{vD+3}] offset:{L_CNT}
  s_mov_b64 exec, -1
  ds_write_b128 v{vT16}, v[{vD}:{vD+3}] offset:{L_LIST}
  ds_write_b128 v{vT16}, v[{vD}:{vD+3}] offset:49152
  s_mul_i32 s61, s2, {NPB}
  s_sub_u32 s61, s61, 1
  v_lshlrev_b32 v{vT}, 2, v0
  s_min_u32 s60, s60, {CH}""")
for i in range(4):
    A(f"""  v_and_b32 v{vT+1}, 0x3fff, v{vE+i}
  v_subrev_u32 v{vT+1}, s61, v{vT+1}       ; local+1
  v_lshrrev_b32 v{vE+i}, 14, v{vE+i}
  v_lshl_or_b32 v{vE+i}, v{vE+i}, 8, v{vT+1}
  v_add_u32 v{vT+2}, {i}, v{vT}
  v_cmp_gt_u32 vcc, s60, v{vT+2}
  v_add_u32 v{vT+1}, -1, v{vT+1}
  v_cmp_gt_u32 s[56:57], {NPB}, v{vT+1}
  s_and_b64 vcc, vcc, s[56:57]
  s_nop 1
  v_cndmask_b32 v{vE+i}, 0, v{vE+i}, vcc""")
A("""  s_waitcnt lgkmcnt(0)
  s_barrier
  s_branch B_build
F_code_end:""")

A(f"""
.section .rodata,"a"
.p2align 6
.amdhsa_kernel {KN}
  .amdhsa_next_free_vgpr {NV}
  .amdhsa_next_free_sgpr 102
  .amdhsa_accum_offset {(NV+3)//4*4}
  .amdhsa_group_segment_fixed_size 0
  .amdhsa_kernarg_size 64
  .amdhsa_user_sgpr_count 2
  .amdhsa_user_sgpr_kernarg_segment_ptr 1
  .amdhsa_system_sgpr_workgroup_id_x 1
.end_amdhsa_kernel""")
print("\n".join(L))
```

```python
import sys, struct, math

N = 12500; E = 400000
NPB = 49; NB = 256
_o = dict(a.split('=') for a in sys.argv[1:])
CH = int(_o.get('ch', 3136)); NCH = (E + CH - 1) // CH; CHL = E - (NCH - 1) * CH
CELL0 = 2048
CELLROW = NCH * 128 + 128 * int(dict(a.split('=') for a in sys.argv[1:]).get('rp', 5))
WS_OVF = 0x900000
OVFCNT_REL = 0x200000
WS_TS = 0x1000000
TK = [0x00000000, 0x6B400000, 0xD6800000, 0x41C00000]
PADC = 0x7FC00000

opt = dict(al=0, pad=0, ch=3136, rp=5, so=8, wt=0, noq=0, pp=0, of=1, cw=1, pre=0, xb=1, xn=0, ua=0, ub=0, ql=0, pk=13, pq=0, prio=1, bp=0, xnt=0, xe=1, ts=0, pf=0, pfp=0, pfl=0, limit=40000, slp=2, na=1024)
for a in sys.argv[1:]:
    k, v = a.split("=")
    opt[k] = int(v, 0)

OF = ["", " sc1", " nt", " sc0 sc1"][opt["of"]]
L = []
def A(s):
    for line in s.split("\n"):
        L.append(line)

NS = 784
L_CNT = 50 * NS
L_FLAGS = L_CNT + 256
L_LIST = L_FLAGS + 32
L_QN = L_LIST + 1088 * 16
L_WQ = 65536
L_XO = L_WQ + 32768
L_WV = L_XO + 16384
LDS_TOTAL = L_WV + 32768
P_CNT = 32768
P_OCNT = P_CNT + 1024
JUNK = 36864

sX, sSRC, sDST, sWQ = 4, 6, 8, 10
sWV, sOUT, sDBG, sWS = 64, 66, 68, 70
rX, rOUT, rOVF = 12, 16, 20
sT = 24
sTP = 28
sCM = 32
sEP = 35
sW = 36; sP = 37; sU = 38; sODD = 39
sT64 = 72; sMO = 100; sMQ = 74; sMC = 44; sQL = 73
vT16 = 1; vL16 = 2
cXC, cLQ, cACQ, cIDX = 4, 5, 6, 7
cWF, cBF, cQD, cPO = 8, 9, 10, 11
cS16, cSL, cCMA, cCMB = 12, 13, 14, 15
cAR, cSW, cOUT, cNODE = 16, 17, 18, 19
vLB = 20; vQB = 21
vI = 22; vQA = [24, 26, 28]
vT = 30
vA = 38; vAa = 42; vAb = 46
vD = 50
vQ = 58
vX = [74, 90, 106]
vV = 118; vE = 106; vR = 110; vP = 114
vPF = 122
cL4 = 124; cPAD = 125; cFOUR = 126; cSR = 123-1
NV = 128

KN = "standalone__kernel_systems_refs_featgraph__graph_kernel"
for line in open("standalone__kernel_systems_refs_featgraph__graph.s.ref").read().split("\n"):
    if line.startswith("; Override"): break
    A(line)
A(f"; @launch grid=(256,1,1) block=(1024,1,1) lds={LDS_TOTAL}")
A('.amdgcn_target "amdgcn-amd-amdhsa--gfx950"')
A(".text")

TSR = [80+2*i for i in range(9)] + [22, 76, 78, 0]
def ts(i):
    if opt["ts"]:
        A(f"  s_memrealtime s[{TSR[i]}:{TSR[i]+1}]")

def ts_store(idx):
    A("  s_waitcnt lgkmcnt(0)")
    A(f"  s_add_u32 s98, s{sWS}, {WS_TS:#x}")
    A(f"  s_addc_u32 s99, s{sWS+1}, 0")
    A(f"  s_mov_b64 exec, 1")
    A(f"  v_lshrrev_b32 v1, 6, v0")
    A(f"  s_lshl_b32 s3, s2, 4")
    A(f"  v_add_u32 v1, s3, v1")
    A(f"  v_lshlrev_b32 v1, 7, v1")
    for j, i in enumerate(idx):
        A(f"  v_mov_b32 v2, s{TSR[i]}")
        A(f"  v_mov_b32 v3, s{TSR[i]+1}")
        A(f"  global_store_dwordx2 v1, v[2:3], s[98:99] offset:{j*8}")
        A(f"  s_nop 1")

def movs(base, n, val):
    for k in range(n):
        A(f"  v_mov_b32 v{base+k}, {val}")

def zero_fill(z):
    for k in range(4):
        A(f"  ds_write_b128 v{vT16}, v[{z}:{z+3}] offset:{k*16384}")

def dma_w(base, sreg):
    A(f"""  s_lshl_b32 s56, s{sW}, 10
  s_add_u32 m0, s56, {base}
  v_add_u32 v{vT+2}, 0x4000, v2
  global_load_lds_dwordx4 v2, s[{sreg}:{sreg+1}]
  s_add_u32 m0, s56, {base+16384}
  s_nop 0
  global_load_lds_dwordx4 v{vT+2}, s[{sreg}:{sreg+1}]""")

def consts():
    t = vT
    A(f"""  s_and_b32 s56, s{sW}, 3
  s_lshl_b32 s57, s56, 2                   ; T'*4
  s_lshl_b32 s{sT64}, s56, 6               ; T'*64
  s_and_b32 s58, s{sW}, 12
  s_lshl_b32 s58, s58, 2                   ; 16*tile
  v_and_b32 v{t}, 7, v0
  v_lshlrev_b32 v{t}, 4, v{t}              ; u*16
  v_or_b32 v{cXC}, {PADC:#x}, v{t}
  v_add_u32 v{cLQ}, 512, v{t}
  v_and_b32 v{t+1}, 16, v0
  v_add_u32 v{t+1}, v{t+1}, v{t}
  v_subrev_u32 v{cACQ}, 512, v{t+1}
  v_bfe_u32 v{t+1}, v0, 3, 3
  s_xor_b32 s59, s{sW}, {opt["so"]}
  s_lshl_b32 s59, s59, 4
  v_add_u32 v{t+1}, s59, v{t+1}
  v_lshl_add_u32 v119, v{t+1}, 7, v{t}     ; its LDS address
  s_movk_i32 s59, {CELLROW}
  v_mad_u32_u24 v{cPO}, v{t+1}, s59, v{t}
  v_and_b32 v{t+1}, 3, v0                  ; c
  v_mul_u32_u24 v{cIDX}, 0x5555, v{t+1}
  s_lshl_b32 s59, s{sW}, 3
  s_and_b32 s59, s59, 48                   ; 16*(w>>1)
  v_bfe_u32 v{t+2}, v0, 3, 3
  v_mul_u32_u24 v{cSR}, 144, v{t+2}
  v_add_u32 v{cSR}, v{cSR}, v{t}
  v_add_u32 v{t+2}, s59, v{t+2}
  v_lshl_add_u32 v{cOUT}, v{t+2}, 8, v{t}
  v_cmp_gt_u32 vcc, {NPB}, v{t+2}
  v_cmp_gt_u32 s[{sMO}:{sMO+1}], {NPB-8}, v{t+2}
  v_bfrev_b32 v{t+2}, 2
  v_cndmask_b32 v{cOUT}, v{t+2}, v{cOUT}, vcc
  v_and_b32 v{t}, 15, v0                   ; j
  v_xor_b32 v{t+1}, s57, v{t}
  v_and_b32 v{t+2}, 12, v0
  v_and_b32 v{t+3}, 48, v0
  s_mov_b32 s59, {L_WQ}
  v_lshl_add_u32 v{cWF}, v{t+3}, 7, s59
  v_lshl_add_u32 v{cWF}, v{t+2}, 6, v{cWF}
  v_lshl_add_u32 v{cWF}, v{t+1}, 4, v{cWF}
  v_bfe_u32 v{t+1}, v0, 4, 2               ; g
  v_xor_b32 v{t+2}, v{t+1}, v{t}
  v_add_u32 v{t+3}, s58, v{t}              ; node
  s_mov_b32 s59, {L_XO}
  v_lshl_add_u32 v{cBF}, v{t+3}, 8, s59
  v_lshl_add_u32 v{cBF}, v{t+2}, 4, v{cBF}
  v_cmp_gt_u32 s[{sMQ}:{sMQ+1}], {NPB}, v{t+3}
  v_mul_u32_u24 v{t+3}, {NS}, v{t+3}
  s_lshl_b32 s59, s{sW}, 3
  s_and_b32 s59, s59, 48
  v_add_u32 v{t+2}, s59, v{t}
  v_mul_u32_u24 v{t+2}, {NS}, v{t+2}
  v_lshl_add_u32 v{cAR}, v{t+1}, 5, v{t+2}
  v_lshl_add_u32 v{cQD}, v{t+1}, 4, v{t+3}
  v_add_u32 v{cQD}, s{sT64}, v{cQD}
  s_mov_b32 s59, {L_LIST}
  v_lshl_add_u32 v{cSL}, v{t+1}, 2, s59
  v_mul_u32_u24 v{t}, 144, v{t}
  s_mul_i32 s57, s{sW}, 2304
  s_add_u32 s57, s57, s59
  v_lshl_add_u32 v{t}, v{t+1}, 4, v{t}
  v_add_u32 v{cSW}, s57, v{t}
  v_add_u32 v{cSR}, s57, v{cSR}
  v_and_b32 v{t}, 8, v0
  s_lshl_b32 s57, s{sW}, 5
  v_lshl_add_u32 v{cS16}, v{t}, 1, s57
  v_bfe_u32 v{t}, v0, 5, 1
  s_lshl_b32 s57, s{sW}, 3
  v_lshl_add_u32 v{cCMA}, v{t}, 2, s57
  v_and_b32 v{t}, 31, v0
  s_mov_b32 s59, {L_QN-4}
  v_lshl_add_u32 v{cCMB}, v{t}, 2, s59
  v_and_b32 v{t}, 63, v0
  v_mul_u32_u24 v{cNODE}, {NS}, v{t}
  s_mov_b32 s54, 0x400000
  s_mov_b32 s55, 0x3fff00
  s_mov_b32 s62, 0
  s_mov_b32 s48, 0x00ff00ff
  s_mov_b32 s49, 0xff00ff00""")
    movs(vA, 12, 0)
    A(f"""  v_bfe_u32 v{cL4}, v{vT16}, 2, 8
  v_mov_b32 v{cPAD}, {PADC:#x}
  v_mov_b32 v{cFOUR}, 4
  s_mov_b64 s[50:51], 0
  s_mov_b64 s[52:53], 0
  s_mul_i32 s3, s2, {CELLROW}
  v_min_u32 v127, {NCH*128-16}, v{vT16}
  v_add_u32 v127, s3, v127
  s_mov_b32 s61, 0xbe0293ee                ; -log2(e)/sqrt(128)
  s_mov_b32 s60, {opt["limit"]}""")
    if opt["pk"] or opt["pq"]: pf_setup(0)

def dma_x(lbl):
    if opt["noq"]:
        A("  buffer_load_dword v121, v3, s[12:15], 0 offen offset:4000") if False else A("  global_load_dword v121, v2, s[10:11]")
        return
    A(f"""  s_lshl_b32 s56, s{sW}, 10
  s_add_u32 m0, s56, {L_XO}
  s_mul_i32 s57, s2, {NPB*256}
  s_cmp_gt_u32 s{sW}, 12
  s_cbranch_scc1 {lbl}
  buffer_load_dwordx4 v3, s[{rX}:{rX+3}], s57 offen{" nt" if opt["xnt"] else ""} lds
{lbl}:""")

def tags():
    A(f"""  s_add_u32 s{sEP}, s{sEP}, 1
  s_lshl_b32 s{sT}, s{sEP}, 22""")
    for k in range(1, 4):
        A(f"  s_xor_b32 s{sT+k}, s{sT}, {TK[k]:#x}")

NA = opt["na"]
NP = (25000 - 16 * NA + 15) // 16
def prefetch(grpP, lbl):
    n = NP if grpP else NA
    if n <= 0:
        return 0
    A(f"  s_lshr_b32 s3, s2, 3")
    if grpP:
        A(f"  s_mul_i32 s3, s3, {NP*128}")
        A(f"  s_add_u32 s3, s3, {16*NA*128}")
    else:
        A(f"  s_sub_u32 s3, s3, 16")
        A(f"  s_mul_i32 s3, s3, {NA*128}")
    A(f"  v_lshlrev_b32 v123, 7, v0")
    done = 0
    while done < n:
        m = min(1024, n - done)
        if m < 1024:
            A(f"""  v_mov_b32 v{vPF}, {m}
  v_cmp_gt_u32 vcc, v{vPF}, v0
  s_mov_b64 exec, vcc
  s_cbranch_execz {lbl}""")
        A(f"  buffer_load_dword v2, v123, s[{rX}:{rX+3}], s3 offen")
        done += m
        if done < n:
            A(f"  s_add_u32 s3, s3, {1024*128}")
    A(f"{lbl}:\n  s_mov_b64 exec, -1")

def pf_setup(K):
    A(f"""  s_lshr_b32 s3, s2, 3
  s_mul_i32 s3, s3, 400
  s_mul_i32 s56, s{sW}, 25
  s_add_u32 s3, s3, s56
  s_lshl_b32 s98, s3, 7
  v_lshlrev_b32 v123, 5, v{cL4}""")

def pf_issue(lo, hi):
    m = ((1 << hi) - 1) ^ ((1 << lo) - 1)
    A(f"""  s_mov_b32 exec_lo, {m & 0xffffffff:#x}
  s_mov_b32 exec_hi, {m >> 32:#x}
  buffer_load_dword v2, v123, s[{rX}:{rX+3}], s98 offen
  s_mov_b64 exec, -1""")

def upf(K, skip, lbl):
    m = (1 << K) - 1
    A(f"""  s_cmp_lt_u32 s2, 128
  s_cbranch_scc1 {lbl}
  s_lshr_b32 s3, s2, 3
  s_mul_i32 s3, s3, 784
  s_mul_i32 s56, s{sW}, 49
  s_add_u32 s3, s3, s56
  s_add_u32 s3, s3, {skip}
  s_lshl_b32 s3, s3, 7
  v_lshlrev_b32 v123, 5, v{cL4}
  s_mov_b32 exec_lo, {m & 0xffffffff:#x}
  s_mov_b32 exec_hi, {m >> 32:#x}
  buffer_load_dword v2, v123, s[{rX}:{rX+3}], s3 offen
  s_mov_b64 exec, -1
{lbl}:""")

def w_frag_reads(addr, base, s, off=0):
    for b in range(2):
        r = base + (b*4+s)*4
        A(f"  ds_read_b64_tr_b16 v[{r}:{r+1}], v{addr} offset:{off + s*8192 + 8*b}")
        A(f"  ds_read_b64_tr_b16 v[{r+2}:{r+3}], v{addr} offset:{off + s*8192 + 1024 + 8*b}")

A(f"""
.globl {KN}
.p2align 8
.type {KN},@function
{KN}:""")
ts(0)
pD, pS, pB, pE, pR = 74, 78, 82, 86, 90
A(f"""  s_load_dwordx8 s[4:11], s[0:1], 0
  s_load_dwordx8 s[64:71], s[0:1], 32
  s_cmp_ge_u32 s2, 256
  s_cbranch_scc1 B_done
  v_lshlrev_b32 v{vT16}, 4, v0
  v_readfirstlane_b32 s{sW}, v0
  v_lshlrev_b32 v2, 2, v0
  v_and_b32 v2, 0xc0, v2
  v_xor_b32 v2, v2, v{vT16}
  v_and_b32 v3, 0xf0, v0
  v_xor_b32 v3, v3, v{vT16}
  s_lshr_b32 s{sW}, s{sW}, 6
  s_mov_b32 s{rX+2}, {N*256}
  s_mov_b32 s{rX+3}, 0x20000""")
if opt["cw"]:
    A(f"""  s_cmp_lt_u32 s{sW}, 14
  s_cbranch_scc1 F_nocw
  s_getpc_b64 s[98:99]
F_pc:
  v_and_b32 v120, 127, v0
  v_lshlrev_b32 v120, 7, v120
  v_min_u32 v120, F_code_end-F_pc-4, v120
  global_load_dword v121, v120, s[98:99]
F_nocw:""")
movs(vD, 4, 0)
A(f"""  s_cmp_ge_u32 s2, {NCH}
  s_cbranch_scc1 F_nopart
  s_mul_i32 s3, s2, {CH*4}
  v_add_u32 v{vT}, s3, v{vT16}
  s_cmp_eq_u32 s2, {NCH-1}
  s_movk_i32 s3, {CH//4}
  s_cselect_b32 s3, {CHL//4}, s3
  v_cmp_gt_u32 s[40:41], s3, v0""")
movs(vD+4, 4, -1)
A(f"""  s_mov_b64 exec, s[40:41]
  s_waitcnt lgkmcnt(0)
  s_cbranch_execz F_noload
  global_load_dwordx4 v[{pD}:{pD+3}], v{vT}, s[{sDST}:{sDST+1}] nt
  global_load_dwordx4 v[{pS}:{pS+3}], v{vT}, s[{sSRC}:{sSRC+1}] nt
F_noload:
  s_mov_b64 exec, -1
  ds_write_b128 v{vT16}, v[{vD+4}:{vD+7}]
  ds_write_b128 v{vT16}, v[{vD+4}:{vD+7}] offset:16384
  ds_write_b128 v{vT16}, v[{vD}:{vD+3}] offset:32768
  s_mov_b64 s[{rX}:{rX+1}], s[{sX}:{sX+1}]
  s_waitcnt lgkmcnt(0)
  s_load_dword s{sEP}, s[{sWS}:{sWS+1}], 0
  s_barrier""")
ts(9)
if opt["xb"]: dma_x("F_nx0")
dma_w(L_WQ, sWQ)
consts()
A(f"""  s_mov_b64 exec, s[40:41]
  s_cbranch_execz F_placed
  s_movk_i32 s58, 21400
  v_mov_b32 v{vT+4}, 4
  s_movk_i32 s59, -49
  s_waitcnt vmcnt({4 if opt["xb"] else 3})""")
ts(10)
for i in range(4):
    A(f"  v_mul_u32_u24 v{pB+i}, s58, v{pD+i}")
for i in range(4):
    A(f"  v_lshrrev_b32 v{pB+i}, 20, v{pB+i}")
for i in range(4):
    A(f"  v_mad_i32_i24 v{pE+i}, v{pB+i}, s59, v{pD+i}")
    A(f"  v_lshlrev_b32 v{pB+i}, 2, v{pB+i}")
    A(f"  ds_add_rtn_u32 v{pR+i}, v{pB+i}, v{vT+4} offset:{P_CNT}")
A(f"  s_waitcnt vmcnt({3 if opt['xb'] else 2})")
if not opt["ql"] and not opt["xb"]: dma_x("F_nx0")
ts(11)
for i in range(4):
    A(f"  v_lshl_add_u32 v{pE+i}, v{pS+i}, 8, v{pE+i}")
A("  s_movk_i32 s58, 124")
A("  s_waitcnt lgkmcnt(0)")
A(f"  v_max3_u32 v{vT+5}, v{pR}, v{pR+1}, v{pR+2}")
A(f"  v_max_u32 v{vT+5}, v{vT+5}, v{pR+3}")
A(f"  v_cmp_lt_u32 vcc, s58, v{vT+5}")
A(f"  s_cbranch_vccnz F_ovf") if False else A("  s_cmp_lg_u64 vcc, 0\n  s_cbranch_scc1 F_ovf")
A("F_ovfdone:")
for i in range(4):
    A(f"  v_add_u32 v{pR+i}, v{pR+i}, v{pB+i}")
    A(f"  v_and_b32 v{pR+i}, s58, v{pR+i}")
    A(f"  v_lshl_add_u32 v{pR+i}, v{pB+i}, 5, v{pR+i}")
    A(f"  ds_write_b32 v{pR+i}, v{pE+i}")
A(f"""F_placed:
  s_mov_b64 exec, -1
  v_mov_b32 v{vT+4}, {P_OCNT}
  s_waitcnt lgkmcnt(0)
  s_barrier
  {"s_memrealtime s[0:1]" if opt["ts"] else ""}
  ds_read_b32 v{pB}, v{vT+4}
  ds_read_b128 v[{pD}:{pD+3}], v119
  ds_read_b128 v[{pS}:{pS+3}], v119 offset:1024""")
tags()
for k in range(4):
    A(f"  s_add_u32 s{sTP+k}, s{sT+k}, 1")
A(f"""  s_lshl_b32 s3, s2, 7
  s_add_u32 s56, s{sWS}, s3
  s_addc_u32 s57, s{sWS+1}, 0
  s_add_u32 s58, s56, {8*CELLROW}
  s_addc_u32 s59, s57, 0
  s_waitcnt lgkmcnt(2)
  v_readfirstlane_b32 s99, v{pB}
  s_cmp_lg_u32 s99, 0
  s_cbranch_scc1 F_cnt
F_cntdone:
  s_waitcnt lgkmcnt(1)""")
for k in range(4):
    A(f"  v_add_u32 v{pD+k}, s{sTP+k}, v{pD+k}")
A(f"  global_store_dwordx4 v{cPO}, v[{pD}:{pD+3}], s[56:57] offset:{CELL0} sc1")
A("  s_waitcnt lgkmcnt(0)")
for k in range(4):
    A(f"  v_add_u32 v{pS+k}, s{sTP+k}, v{pS+k}")
A(f"  global_store_dwordx4 v{cPO}, v[{pS}:{pS+3}], s[58:59] offset:{CELL0} sc1")
ts(1)
if opt["ql"]:
    dma_x("F_nx0")
    zero_fill(vD)
    dma_w(L_WV, sWV)
    A(f"  s_mov_b32 s{sQL}, 1")
    A("  s_waitcnt lgkmcnt(0)\n  s_barrier")
    ts(2)
    A(f"""  global_load_dwordx4 v[{vE}:{vE+3}], v127, s[{sWS}:{sWS+1}] offset:{CELL0} sc1
  s_branch F_wait""")
else:
    A(f"""  ds_write_b128 v119, v[{vD}:{vD+3}]
  ds_write_b128 v119, v[{vD}:{vD+3}] offset:1024
  ds_write_b128 v{vT16}, v[{vD}:{vD+3}] offset:32768
  ds_write_b128 v{vT16}, v[{vD}:{vD+3}] offset:49152""")
    A(f"  s_mov_b32 s{sQL}, 0")
    A(f"  s_waitcnt vmcnt(2) lgkmcnt(0)\n  s_barrier")
A(f"""  s_branch F_join
F_nopart:""")
A(f"""  s_waitcnt lgkmcnt(0)
  s_load_dword s{sEP}, s[{sWS}:{sWS+1}], 0
  s_mov_b64 s[{rX}:{rX+1}], s[{sX}:{sX+1}]""")
if opt["xn"]: dma_x("F_nx1")
dma_w(L_WQ, sWQ)
zero_fill(vD)
consts()
if not opt["xn"]:
    A("  s_waitcnt vmcnt(0)")
    ts(9)
    dma_x("F_nx1")
if opt["pf"] and not opt["pfl"]:
    assert NA % 1024 == 0
    A("  s_cmp_lt_u32 s2, 128\n  s_cbranch_scc1 F_pfx")
    prefetch(False, "F_pf0")
    A(f"  s_waitcnt vmcnt({NA//1024}) lgkmcnt(0)")
    A("  s_branch F_z\nF_pfx:")
A("  s_waitcnt vmcnt(0) lgkmcnt(0)")
A("F_z:")
A(f"  s_mov_b32 s{sQL}, 0")
tags()
A("  s_barrier")
if opt["pfp"] or (opt["pf"] and opt["pfl"]):
    A("  s_cmp_ge_u32 s2, 128\n  s_cbranch_scc1 F_late")
    if opt["pfp"]: prefetch(True, "F_pfq")
    A("  s_branch F_join\nF_late:")
    if opt["pf"] and opt["pfl"]:
        prefetch(False, "F_pf0")
ts(1)
A("F_join:")
ts(2)
dma_w(L_WV, sWV)
if opt["ua"]: upf(opt["ua"], 0, "F_ua")
if opt["pq"]: pf_issue(0, opt["pq"])
FA = 74; FB = 58
def q_compute(mid=None):
    for s in range(4):
        w_frag_reads(cWF, FA, s)
        if s:
            A(f"  v_xor_b32 v{vI+s-1}, {s*64}, v{cBF}")
            A(f"  ds_read_b128 v[{FB+4*s}:{FB+4*s+3}], v{vI+s-1}")
        else:
            A(f"  ds_read_b128 v[{FB}:{FB+3}], v{cBF}")
    for s in range(4):
        A(f"  s_waitcnt lgkmcnt({min(15,(3-s)*5)})")
        for b in range(2):
            d = vD + 4*b
            a = FA + (b*4+s)*4
            c = "0" if s == 0 else f"v[{d}:{d+3}]"
            A(f"  v_mfma_f32_16x16x32_bf16 v[{d}:{d+3}], v[{a}:{a+3}], v[{FB+4*s}:{FB+4*s+3}], {c}")
    if mid: mid()
    A(f"  s_mov_b64 exec, s[{sMQ}:{sMQ+1}]")
    A("  s_nop 6")
    for k in range(0, 8, 2):
        A(f"  v_pk_mul_f32 v[{vD+k}:{vD+k+1}], v[{vD+k}:{vD+k+1}], s[60:61] op_sel:[0,1] op_sel_hi:[1,1]")
    for k in range(4):
        A(f"  v_cvt_pk_bf16_f32 v{FB+k}, v{vD+2*k}, v{vD+2*k+1}")
    A(f"  ds_write_b128 v{cQD}, v[{FB}:{FB+3}] offset:{NS+512}")
    A("  s_mov_b64 exec, -1")
    for k in range(0, 8, 2):
        A(f"  v_mov_b64 v[{vD+k}:{vD+k+1}], 0")

def first_poll():
    if opt["wt"]:
        A(f"""F_wt:
  s_memrealtime s[98:99]
  s_waitcnt lgkmcnt(0)
  s_sub_u32 s98, s98, s80
  s_cmp_lt_u32 s98, {opt["wt"]}
  s_cbranch_scc1 F_wt""")
    if opt["pre"]:
        A(f"  s_cmp_lt_u32 s2, 125\n  s_cbranch_scc1 F_nopre\n  s_sleep {opt['pre']}\nF_nopre:")
    if opt["ub"]: upf(opt["ub"], opt["ua"], "F_ub")
    A(f"""  global_load_dwordx4 v[{vE}:{vE+3}], v127, s[{sWS}:{sWS+1}] offset:{CELL0} sc1""")

if opt["noq"]:
    movs(vD, 8, 0)
    if opt["noq"] == 1: A(f"""  s_mov_b64 exec, 0xff
F_pre:
  global_load_dwordx4 v[{vE}:{vE+3}], v127, s[{sWS}:{sWS+1}] offset:{CELL0} sc1
  s_waitcnt vmcnt(0)
  v_xor_b32 v{vT}, s{sT}, v{vE}
  v_cmp_le_u32 vcc, s54, v{vT}
  s_cmp_eq_u64 vcc, 0
  s_cbranch_scc1 F_pre2
  s_sleep 4
  s_branch F_pre
F_pre2:""")
    first_poll()
else:
    q_compute(first_poll)
A("F_wait:")
ts(3)
PL = f"  global_load_dwordx4 v[{vE}:{vE+3}], v127, s[{sWS}:{sWS+1}] offset:{CELL0} sc1"
CHK = f"""  v_xor_b32 v{vT}, s{sT}, v{vE}
  v_bitop3_b32 v{vT}, v{vE+1}, s{sT+1}, v{vT} bitop3:0xbe
  v_bitop3_b32 v{vT}, v{vE+2}, s{sT+2}, v{vT} bitop3:0xbe
  v_bitop3_b32 v{vT}, v{vE+3}, s{sT+3}, v{vT} bitop3:0xbe
  v_cmp_le_u32 vcc, s54, v{vT}
  s_mov_b64 exec, vcc"""
if not opt["pp"]:
    A(f"""  s_branch F_polltest
F_poll:
  s_sleep {opt["slp"]}
  s_sub_u32 s60, s60, 1
  s_cbranch_scc1 F_giveup
{PL}
F_polltest:
  s_waitcnt vmcnt(0)
{CHK}
  s_cbranch_execnz F_poll
F_polled:
  s_mov_b64 exec, -1""")
else:
    A(f"""  s_waitcnt vmcnt(0)
{CHK}
  s_cbranch_execz F_polled
{PL}
F_poll:
  s_sleep {opt["pp"]}
  s_sub_u32 s60, s60, 1
  s_cbranch_scc1 F_giveup
{PL}
  s_waitcnt vmcnt(1)
{CHK}
  s_cbranch_execnz F_poll
F_polled:
  s_mov_b64 exec, -1""")
if opt["pk"]: pf_issue(opt["pq"], opt["pk"])
ts(4)
if NCH < 128:
    A(f"""  v_cmp_le_u32 vcc, {NCH*8}, v0
  s_mov_b64 exec, vcc""")
    movs(vE, 4, 0)
    A("  s_mov_b64 exec, -1")
A("B_build:")
for i in range(4):
    A(f"  v_lshlrev_b32_sdwa v{vP+i}, 2, v{vE+i} dst_sel:DWORD dst_unused:UNUSED_PAD src0_sel:DWORD src1_sel:BYTE_0")
A(f"  v_max3_u32 v{vT}, v{vP}, v{vP+1}, v{vP+2}")
A(f"  v_max_u32 v{vT}, v{vT}, v{vP+3}")
A(f"  v_cmp_lt_u32 vcc, 0xf8, v{vT}")
A(f"  s_cmp_lg_u64 vcc, 0\n  s_cbranch_scc1 B_mark\nB_nomark:")
for i in range(4):
    A(f"  v_cmp_ne_u32 s[{40+2*i}:{41+2*i}], 0, v{vP+i}")
for i in range(4):
    A(f"  s_mov_b64 exec, s[{40+2*i}:{41+2*i}]")
    A(f"  ds_add_rtn_u32 v{vR+i}, v{vP+i}, v{cFOUR} offset:{L_CNT}")
A("  s_mov_b64 exec, -1")
for i in range(4):
    A(f"  v_bitop3_b32 v{vV+i}, v{vE+i}, s55, v{cPAD} bitop3:0x6a")
A(f"""  s_waitcnt lgkmcnt(0)
  s_barrier
  ds_read_b32 v{vT+1}, v{cL4} offset:{L_CNT}
  ds_read_b32 v{vT+7}, v{cFOUR} offset:{L_FLAGS+12}
  s_cmp_lg_u32 s{sQL}, 0
  s_cbranch_scc1 B_lateq
B_lateq_ret:
  s_lshl_b32 s58, s{sW}, 2
  s_mov_b32 s59, s{sW}
  s_waitcnt lgkmcnt(1)
  v_add_u32 v{vT+1}, 12, v{vT+1}
  v_lshrrev_b32 v{vT+1}, 4, v{vT+1}        ; nq
  s_nop 1
  v_add_u32_dpp v{vT+2}, v{vT+1}, v{vT+1} row_shr:1 row_mask:0xf bank_mask:0xf bound_ctrl:0
  s_nop 1
  v_add_u32_dpp v{vT+2}, v{vT+2}, v{vT+2} row_shr:2 row_mask:0xf bank_mask:0xf
  s_nop 1
  v_add_u32_dpp v{vT+2}, v{vT+2}, v{vT+2} row_shr:4 row_mask:0xf bank_mask:0xf
  s_nop 1
  v_add_u32_dpp v{vT+2}, v{vT+2}, v{vT+2} row_shr:8 row_mask:0xf bank_mask:0xf
  s_nop 1
  v_add_u32_dpp v{vT+2}, v{vT+2}, v{vT+2} row_bcast:15 row_mask:0xa bank_mask:0xf
  s_nop 1
  v_add_u32_dpp v{vT+2}, v{vT+2}, v{vT+2} row_bcast:31 row_mask:0xc bank_mask:0xf
  s_nop 0
  v_sub_u32 v{vT}, v{vT+2}, v{vT+1}        ; qstart
  v_readlane_b32 s{sP}, v{vT+2}, 63        ; T4
  v_lshlrev_b32 v{vT+2}, 4, v{vT}          ; qstart*16""")
for i in range(4):
    A(f"  ds_bpermute_b32 v{vP+i}, v{vP+i}, v{vT+2}")
A(f"""  v_lshl_add_u32 v{vT}, v{vT}, 2, s58
  s_add_u32 s{sP}, s{sP}, 31
  s_lshr_b32 s{sP}, s{sP}, 5
B_qn:
  v_cmp_lt_u32 vcc, s59, v{vT+1}
  s_add_u32 s59, s59, 16
  v_cmp_lt_u32 s[56:57], s59, v{vT+1}
  s_mov_b64 exec, vcc
  ds_write_b32 v{vT}, v{cNODE} offset:{L_QN}
  s_mov_b64 exec, -1
  s_cmp_lg_u64 s[56:57], 0
  s_cbranch_scc1 B_qnmore
  v_cmp_lt_u32 vcc, s{sP}, v{vT+1}
  s_mov_b32 s63, s62
  s_cmp_lg_u64 vcc, 0
  s_cbranch_scc1 B_mode
B_modedone:
  v_mad_u32_u24 v{vLB}, v{cS16}, s{sP}, v{cSL}
  v_mul_u32_u24 v{vQB}, s{sP}, v{cS16}
  v_mad_u32_u24 v{vT}, v{cCMA}, s{sP}, v{cCMB}
  v_lshrrev_b32 v{vQB}, 2, v{vQB}
  s_waitcnt lgkmcnt(0)""")
for i in range(4):
    A(f"  v_add_u32 v{vR+i}, v{vR+i}, v{vP+i}")
for i in range(4):
    A(f"  s_mov_b64 exec, s[{40+2*i}:{41+2*i}]")
    A(f"  ds_write_b32 v{vR+i}, v{vV+i} offset:{L_LIST}")
A(f"""  s_mov_b64 exec, -1
  v_readfirstlane_b32 s56, v{vT+7}
  s_cmp_lg_u32 s56, 0
  s_cbranch_scc1 B_flags
B_noflags:
  s_cmp_gt_u32 s{sP}, 32
  s_cbranch_scc1 B_raw""")
A(f"""  s_add_u32 s{sU}, s{sP}, 1
  s_lshr_b32 s{sU}, s{sU}, 1
  s_and_b32 s{sODD}, s{sP}, 1
  s_mul_i32 s57, s{sODD}, 3                ; units-left value at which the unit two ahead has a single pair
  s_cmp_le_u32 s{sP}, 5
  s_waitcnt lgkmcnt(0)
  s_barrier""")
ts(5)
if opt["ts"]: A("  s_memtime s[76:77]")
A(f"""  ds_read2_b32 v[{vI}:{vI+1}], v{vLB} offset0:0 offset1:4
  v_add_u32 v{vQB}, {L_QN}, v{vQB}
  ds_read2_b32 v[{vT+4}:{vT+5}], v{vLB} offset0:8 offset1:12
  ds_read2_b32 v[{vQA[0]}:{vQA[0]+1}], v{vQB} offset0:0 offset1:1
  ds_read2_b32 v[{vT+2}:{vT+3}], v{vT} offset0:0 offset1:1
  s_cbranch_scc1 B_small""")

def loads_a(x, i):
    return (f"  v_xor_b32 v{i}, v{i}, v{cXC}\n"
            f"  buffer_load_dwordx4 v[{x}:{x+3}], v{i}, s[{rX}:{rX+3}], 0 offen\n"
            f"  buffer_load_dwordx4 v[{x+8}:{x+11}], v{i}, s[{rX}:{rX+3}], 0 offen offset:128")
def loads_b(x, i):
    return (f"  v_xor_b32 v{i}, v{i}, v{cXC}\n"
            f"  buffer_load_dwordx4 v[{x+4}:{x+7}], v{i}, s[{rX}:{rX+3}], 0 offen\n"
            f"  buffer_load_dwordx4 v[{x+12}:{x+15}], v{i}, s[{rX}:{rX+3}], 0 offen offset:128")
def q_reads(q):
    A(f"  v_add_u32 v{q}, v{q}, v{cLQ}")
    A(f"  v_add_u32 v{q+1}, v{q+1}, v{cLQ}")
    A(f"  ds_read_b128 v[{vQ}:{vQ+3}], v{q}")
    A(f"  ds_read_b128 v[{vQ+4}:{vQ+7}], v{q+1}")
    A(f"  ds_read_b128 v[{vQ+8}:{vQ+11}], v{q} offset:128")
    A(f"  ds_read_b128 v[{vQ+12}:{vQ+15}], v{q+1} offset:128")

A("B_start:\n  s_waitcnt lgkmcnt(3)")
A(loads_a(vX[0], vI)); A(loads_b(vX[0], vI+1))
A("  s_waitcnt lgkmcnt(2)")
A(loads_a(vX[1], vT+4)); A(loads_b(vX[1], vT+5))
A("B_started:")
A(f"  ds_read2_b32 v[{vI}:{vI+1}], v{vLB} offset0:16 offset1:20")
A("  s_waitcnt lgkmcnt(1)")
A(f"  v_cmp_ne_u32 s[{sCM}:{sCM+1}], v{vT+2}, v{vT+3}")
q_reads(vQA[0])
A(f"""  s_bitset0_b32 s{sCM}, 0
  s_bitset0_b32 s{sCM+1}, 0
  s_or_b32 s34, s{sCM}, s{sCM+1}""")

ool = []
def flush_block(lbl, qa, bit):
    s = f"""{lbl}:
  s_bitcmp1_b32 s{sCM}, {bit}
  s_cselect_b32 exec_lo, s48, 0
  s_bitcmp1_b32 s{sCM+1}, {bit}
  s_cselect_b32 exec_hi, s49, 0
  v_add_u32 v{vT+4}, v{qa}, v{cACQ}
  s_cmp_ge_u32 s63, 2
  s_cbranch_scc1 {lbl}_at
  s_nop 2
  ds_write_b128 v{vT+4}, v[{vD}:{vD+3}]
  ds_write_b128 v{vT+4}, v[{vD+4}:{vD+7}] offset:256
{lbl}_z:
  s_nop 1
"""
    for k in range(0, 8, 2):
        s += f"  v_mov_b64 v[{vD+k}:{vD+k+1}], 0\n"
    s += "  s_mov_b64 exec, -1\n"
    tail = f"{lbl}_at:\n  s_nop 2\n"
    for k in range(8):
        tail += f"  ds_add_f32 v{vT+4}, v{vD+k} offset:{(k//4)*256 + (k%4)*4}\n"
    tail += f"  s_branch {lbl}_z\n"
    return s, tail

def smf(a, x):
    return (f"  v_smfmac_f32_16x16x64_bf16 v[{vD}:{vD+3}], v[{a}:{a+3}], v[{x}:{x+7}], v{cIDX}\n"
            f"  v_smfmac_f32_16x16x64_bf16 v[{vD+4}:{vD+7}], v[{a}:{a+3}], v[{x+8}:{x+15}], v{cIDX}")

def abuild(a, r, rowmask):
    return (f"  v_mov_b32_dpp v{a}, v{r} quad_perm:[0,1,2,3] row_mask:{rowmask:#x} bank_mask:0x5\n"
            f"  v_mov_b32_dpp v{a+1}, v{r} row_half_mirror row_mask:{rowmask:#x} bank_mask:0xa\n"
            f"  v_mov_b32_dpp v{a+2}, v{r} row_half_mirror row_mask:{rowmask:#x} bank_mask:0x5\n"
            f"  v_mov_b32_dpp v{a+3}, v{r} quad_perm:[0,1,2,3] row_mask:{rowmask:#x} bank_mask:0xa")

SH = f"  s_lshr_b32 s34, s34, 2\n  s_lshr_b32 s{sCM}, s{sCM}, 2\n  s_lshr_b32 s{sCM+1}, s{sCM+1}, 2"
def body(n):
    x = vX[n]; xn = vX[(n+2) % 3]
    qa = vQA[n]; qn = vQA[(n+1) % 3]; qp = vQA[(n+2) % 3]
    r = vT + 2
    pa, pb = vT, vT + 1
    A(f"B_u{n}:")
    A(f"  s_bitcmp1_b32 s34, 0")
    A(f"  s_cbranch_scc1 B_fa{n}")
    A(f"B_fa{n}_ret:")
    s, t = flush_block(f"B_fa{n}", qp + 1, 0)
    ool.append(s + f"  s_branch B_fa{n}_ret\n" + t)
    A(f"  ds_read2_b32 v[{qn}:{qn+1}], v{vQB} offset0:{2+2*n} offset1:{3+2*n}")
    A(f"  s_cmp_le_u32 s{sU}, 2")
    A(f"  s_cbranch_scc1 B_nl{n}")
    A(f"  s_cmp_eq_u32 s{sU}, s57")
    A(f"  s_waitcnt lgkmcnt(5)")
    A(loads_a(xn, vI))
    A(f"  s_cbranch_scc1 B_skip{n}")
    A(loads_b(xn, vI+1))
    A(f"  ds_read2_b32 v[{vI}:{vI+1}], v{vLB} offset0:{24+8*n} offset1:{28+8*n}")
    A(f"  s_waitcnt vmcnt(8) lgkmcnt(2)")
    A(f"B_go{n}:")
    ool.append(f"""B_skip{n}:
  s_waitcnt vmcnt(6) lgkmcnt(0)
  s_branch B_go{n}
B_nl{n}:
  {"s_setprio 0" if opt["prio"] else ""}
  s_cmp_eq_u32 s{sU}, 1
  s_cbranch_scc1 B_nl{n}_last
  s_waitcnt vmcnt(2) lgkmcnt(0)
  s_branch B_go{n}
B_nl{n}_last:
  s_lshl_b32 s56, s{sODD}, 1
  s_or_b32 s34, s34, s56
  s_waitcnt vmcnt(0) lgkmcnt(0)
  s_branch B_go{n}
""")
    order = [(0, 4), (1, 5), (2, 6), (3, 7), (8, 12), (9, 13), (10, 14), (11, 15)]
    for k, (ia, ib) in enumerate(order):
        ca = "0" if k == 0 else f"v{pa}"
        cb = "0" if k == 0 else f"v{pb}"
        A(f"  v_dot2_f32_bf16 v{pa}, v{x+ia}, v{vQ+ia}, {ca}")
        A(f"  v_dot2_f32_bf16 v{pb}, v{x+ib}, v{vQ+ib}, {cb}")
    A("  s_waitcnt lgkmcnt(1)")
    q_reads(qn)
    A(f"  v_permlane32_swap_b32 v{pa}, v{pb}")
    if n == 2:
        A(f"  v_add_u32 v{vLB}, 96, v{vLB}")
        A(f"  v_add_u32 v{vQB}, 24, v{vQB}")
    else:
        A("  s_nop 1")
    A(f"  v_permlane16_swap_b32 v{pa}, v{pb}")
    A(f"  s_nop 1")
    A(f"  v_add_f32_dpp v{r}, v{pa}, v{pa} row_half_mirror row_mask:0xf bank_mask:0x5")
    A(f"  v_add_f32_dpp v{r}, v{pb}, v{pb} row_half_mirror row_mask:0xf bank_mask:0xa")
    A(f"  s_nop 1")
    A(f"  v_add_f32_dpp v{r}, v{r}, v{r} quad_perm:[1,0,3,2] row_mask:0xf bank_mask:0xf")
    A(f"  s_nop 1")
    A(f"  v_add_f32_dpp v{r}, v{r}, v{r} quad_perm:[2,3,0,1] row_mask:0xf bank_mask:0xf")
    A(f"  v_exp_f32 v{r}, v{r}")
    A(f"  s_nop 0")
    A(f"  v_add_f32 v{r}, 1.0, v{r}")
    A(f"  v_rcp_f32 v{r}, v{r}")
    A(f"  s_bitcmp1_b32 s34, 1")
    A(f"  v_cvt_pk_bf16_f32 v{r}, v{r}, 0")
    A(f"  s_cbranch_scc1 B_sp{n}")
    A(f"  s_sub_u32 s{sU}, s{sU}, 1")
    A(abuild(vA, r, 0xf))
    A(SH)
    A(smf(vA, x))
    A(f"B_sp{n}_ret:")
    A(f"  s_cmp_eq_u32 s{sU}, 0")
    A(f"  s_cbranch_scc1 B_exit{n}")
    if opt["prio"] == 1 and n == 2:
        A(f"  s_setprio 1")
    if opt["prio"] == 2:
        A(f"""  s_cmp_gt_u32 s{sU}, 5
  s_cbranch_scc1 B_pp{n}
  s_setprio 2
  s_cmp_gt_u32 s{sU}, 3
  s_cbranch_scc1 B_pp{n}
  s_setprio 1
B_pp{n}:""")
    if opt["prio"] == 3:
        A(f"""  s_cmp_gt_u32 s{sU}, 5
  s_cbranch_scc1 B_pp{n}
  s_setprio 2
  s_cmp_gt_u32 s{sU}, 4
  s_cbranch_scc1 B_pp{n}
  s_setprio 1
  s_cmp_gt_u32 s{sU}, 3
  s_cbranch_scc1 B_pp{n}
  s_setprio 0
B_pp{n}:""")
    s, t = flush_block(f"B_sp{n}_f", qa, 1)
    blk = (f"B_sp{n}:\n  s_sub_u32 s{sU}, s{sU}, 1\n" + abuild(vAa, r, 0x3) + "\n" + abuild(vAb, r, 0xc) + "\n"
           + f"  s_add_u32 s56, s{sU}, 1\n  s_cmp_eq_u32 s56, s{sODD}\n" + smf(vAa, x) + f"\n  s_cbranch_scc1 B_odd{n}\n  s_nop 0\n" + s
           + SH + "\n" + smf(vAb, x) + f"\n  s_branch B_sp{n}_ret\n" + t
           + f"B_odd{n}:\n  v_add_u32 v{vT+5}, v{qa}, v{cACQ}\n  s_branch B_final_flush\n"
           + f"B_exit{n}:\n  v_add_u32 v{vT+5}, v{qa+1}, v{cACQ}\n  s_branch B_final_flush\n")
    ool.append(blk)

if opt["prio"]: A("  s_setprio 3")
if opt["al"]: A(f".p2align {opt['al']}")
for _ in range(opt["pad"]): A("  s_nop 0")
body(0)
body(1)
body(2)
A("  s_branch B_u0")
A("B_final_flush:")
ts(6)
FE = 58
def wv_frags(lbl):
    A(f"""  s_cmp_gt_u32 s{sW}, 7
  s_cbranch_scc1 {lbl}
  s_and_b32 s56, s{sW}, 1
  s_lshl_b32 s56, s56, 7
  s_xor_b32 s56, s56, s{sT64}
  v_xor_b32 v{vT}, s56, v{cWF}
  v_add_u32 v{vT}, {L_WV - L_WQ}, v{vT}
  v_xor_b32 v{vT+1}, 64, v{vT}""")
    for tp in range(2):
        for s in range(4):
            w_frag_reads(vT + tp, FE + 32*tp, s)
    A(f"{lbl}:")
wv_frags("B_nofr")
RT = 22
A(f"""  s_waitcnt lgkmcnt(0)
  s_barrier
  {"s_memrealtime s[22:23]" if opt["ts"] == 2 else ""}
  s_mov_b64 exec, s[48:49]
  s_cmp_lg_u32 s63, 0
  s_cbranch_scc1 B_final_special
B_final_rmw:
  ds_read_b128 v[{RT}:{RT+3}], v{vT+5}
  ds_read_b128 v[{RT+4}:{RT+7}], v{vT+5} offset:256
  s_waitcnt lgkmcnt(1)""")
for k in range(0, 4, 2):
    A(f"  v_pk_add_f32 v[{vD+k}:{vD+k+1}], v[{vD+k}:{vD+k+1}], v[{RT+k}:{RT+k+1}]")
A(f"  ds_write_b128 v{vT+5}, v[{vD}:{vD+3}]")
A("  s_waitcnt lgkmcnt(1)")
for k in range(4, 8, 2):
    A(f"  v_pk_add_f32 v[{vD+k}:{vD+k+1}], v[{vD+k}:{vD+k+1}], v[{RT+k}:{RT+k+1}]")
A(f"  ds_write_b128 v{vT+5}, v[{vD+4}:{vD+7}] offset:256")
A(f"""  s_cmp_eq_u32 s63, 1
  s_cbranch_scc1 B_final_phase2
B_final_done:
  s_mov_b64 exec, -1
B_round_fin:
  s_or_b32 s56, s50, s51
  s_or_b32 s57, s52, s53
  s_or_b32 s56, s56, s57
  s_cbranch_scc1 B_more
  s_mov_b64 s[{rOUT}:{rOUT+1}], s[{sOUT}:{sOUT+1}]
  s_mov_b32 s{rOUT+2}, {N*256}
  s_mov_b32 s{rOUT+3}, 0x20000
  s_mul_i32 s3, s2, {NPB*256}
  s_and_b32 s56, s{sW}, 1
  s_lshl_b32 s56, s56, 7
  s_add_u32 s3, s3, s56
  s_cmp_gt_u32 s{sW}, 7
  s_waitcnt lgkmcnt(0)
  {"s_memrealtime s[0:1]" if opt["ts"] == 2 else ""}
  s_barrier""")
ts(7)
if opt["ts"]: A("  s_memtime s[78:79]")
A("  s_cbranch_scc1 B_end")
AC = 22
DO = [4, 8, 12, 54]
for s in range(4):
    A(f"  ds_read_b128 v[{AC+8*s}:{AC+8*s+3}], v{cAR} offset:{NS+s*128}")
    A(f"  ds_read_b128 v[{AC+8*s+4}:{AC+8*s+7}], v{cAR} offset:{NS+s*128+16}")
for s in range(4):
    A(f"  s_waitcnt lgkmcnt({6-2*s})")
    for k in range(4):
        A(f"  v_cvt_pk_bf16_f32 v{AC+4*s+k}, v{AC+8*s+2*k}, v{AC+8*s+2*k+1}")
    A("  s_nop 1")
    for tp in range(2):
        for b in range(2):
            d = DO[2*tp+b]
            a = FE + 32*tp + 4*(b*4+s)
            c = "0" if s == 0 else f"v[{d}:{d+3}]"
            A(f"  v_mfma_f32_16x16x32_bf16 v[{d}:{d+3}], v[{a}:{a+3}], v[{AC+4*s}:{AC+4*s+3}], {c}")
if opt["ts"] == 2: ts(1)
A(f"  s_or_b32 s56, s2, s{sW}")
A("  s_nop 4")
for tp in range(2):
    if tp: A("  s_nop 0")
    for k in range(4):
        d = DO[2*tp + k//2] + 2*(k % 2)
        A(f"  v_cvt_pk_bf16_f32 v{38+4*tp+k}, v{d}, v{d+1}")
    A(f"  ds_write_b128 v{cSW}, v[{38+4*tp}:{41+4*tp}] offset:{64*tp}")
A(f"""  ds_read_b128 v[22:25], v{cSR}
  ds_read_b128 v[26:29], v{cSR} offset:1152
  s_waitcnt lgkmcnt(1)
  buffer_store_dwordx4 v[22:25], v{cOUT}, s[{rOUT}:{rOUT+3}], s3 offen{OF}
  s_mov_b64 exec, s[{sMO}:{sMO+1}]
  s_cbranch_execz B_nost2
  s_waitcnt lgkmcnt(0)
  buffer_store_dwordx4 v[26:29], v{cOUT}, s[{rOUT}:{rOUT+3}], s3 offen offset:2048{OF}
B_nost2:
  {"s_memrealtime s[84:85]" if opt["ts"] == 2 else ""}
  s_cbranch_scc1 B_end
  v_mov_b32 v4, 0
  v_mov_b32 v5, s{sEP}
  s_mov_b64 exec, 1
  global_store_dword v4, v5, s[{sWS}:{sWS+1}]
B_end:""")
if opt["ts"]:
    A("  s_waitcnt vmcnt(0)")
    ts(8)
    A("  s_mov_b64 exec, -1")
    ts_store(range(13))
A("B_done:\n  s_endpgm")

for blk in ool:
    A(blk)
A(f"""B_small:
  s_waitcnt lgkmcnt(0)
  s_cmp_eq_u32 s{sP}, 0
  s_cbranch_scc1 B_empty""")
for xb in vX:
    movs(xb+4, 4, 0)
    movs(xb+12, 4, 0)
A(f"  s_cmp_ge_u32 s{sP}, 4\n  s_cbranch_scc1 B_start")
A(loads_a(vX[0], vI))
A(f"  s_cmp_eq_u32 s{sP}, 1\n  s_cbranch_scc1 B_started")
A(loads_b(vX[0], vI+1))
A(f"  s_cmp_eq_u32 s{sP}, 2\n  s_cbranch_scc1 B_started")
A(loads_a(vX[1], vT+4))
A(f"""  s_branch B_started
B_empty:
  s_barrier""")
wv_frags("B_nofr2")
A("  s_branch B_round_fin")
A("B_lateq:")
q_compute()
A(f"""  s_mov_b32 s{sQL}, 0
  s_branch B_lateq_ret
B_flags:
  s_cmp_lg_u32 s62, 0
  s_cbranch_scc1 B_noflags
  s_bitcmp1_b32 s56, 3
  s_cbranch_scc1 B_raw
  v_mov_b32 v{vT+4}, {L_FLAGS}
  ds_read_b128 v[{vT+4}:{vT+7}], v{vT+4}
  s_waitcnt lgkmcnt(0)
  v_readfirstlane_b32 s53, v{vT+7}
  v_readfirstlane_b32 s50, v{vT+4}
  v_readfirstlane_b32 s51, v{vT+5}
  v_readfirstlane_b32 s52, v{vT+6}
  s_branch B_noflags""")
A(f"""B_qnmore:
  v_add_u32 v{vT}, 64, v{vT}
  s_branch B_qn
B_mode:
  s_max_u32 s{sP}, s{sP}, 13               ; short lists: longer streams instead of split nodes
  v_cvt_f32_u32 v{vT+4}, s{sP}
  v_lshrrev_b32 v{vT+5}, 4, v{vT+2}        ; qstart
  v_rcp_f32 v{vT+4}, v{vT+4}
  v_add_u32 v{vT+6}, v{vT+5}, v{vT+1}      ; qend
  v_cvt_f32_u32 v{vT+5}, v{vT+5}
  v_cvt_f32_u32 v{vT+6}, v{vT+6}
  v_add_f32 v{vT+5}, 0.5, v{vT+5}
  v_add_f32 v{vT+6}, 0.5, v{vT+6}
  v_mul_f32 v{vT+5}, v{vT+5}, v{vT+4}
  v_mul_f32 v{vT+6}, v{vT+6}, v{vT+4}
  v_cvt_u32_f32 v{vT+5}, v{vT+5}
  v_cvt_u32_f32 v{vT+6}, v{vT+6}
  v_sub_u32 v{vT+5}, v{vT+6}, v{vT+5}
  v_cmp_lt_u32 vcc, 1, v{vT+5}
  v_cmp_lt_u32 s[58:59], 2, v{vT+5}
  s_cmp_lg_u64 vcc, 0
  s_cselect_b32 s56, 1, 0
  s_max_u32 s63, s63, s56
  s_cmp_lg_u64 s[58:59], 0
  s_cselect_b32 s56, 2, 0
  s_max_u32 s63, s63, s56
  s_branch B_modedone
B_final_phase2:
  s_waitcnt lgkmcnt(0)
  s_barrier
  s_mov_b32 exec_lo, 0
  s_mov_b32 exec_hi, s49
  s_mov_b32 s63, 0
  s_branch B_final_rmw
B_final_special:
  s_cmp_ge_u32 s63, 2
  s_cbranch_scc1 B_final_atomic
  s_mov_b32 exec_hi, 0
  s_branch B_final_rmw
B_final_atomic:
  v_cmp_le_u32 vcc, {NS}, v{vT+5}
  s_and_b64 exec, exec, vcc""")
for k in range(8):
    A(f"  ds_add_f32 v{vT+5}, v{vD+k} offset:{(k//4)*256 + (k%4)*4}")
A("  s_branch B_final_done")
A(f"""B_mark:
  s_mov_b64 exec, vcc
  v_lshrrev_b32 v{vT}, 3, v0
  v_mov_b32 v{vT+1}, 1
  v_lshlrev_b32 v{vT+1}, v{vT}, v{vT+1}
  v_lshrrev_b32 v{vT}, 5, v{vT}
  v_lshlrev_b32 v{vT}, 2, v{vT}
  ds_or_b32 v{vT}, v{vT+1} offset:{L_FLAGS}
  ds_or_b32 v{cFOUR}, v{cFOUR} offset:{L_FLAGS+12}
  s_mov_b64 exec, -1""")
for i in range(4):
    A(f"  v_and_b32 v{vP+i}, 0xfc, v{vP+i}")
A("  s_branch B_nomark")
def ovf_srd():
    A(f"""  s_add_u32 s{rOVF}, s{sWS}, {WS_OVF:#x}
  s_addc_u32 s{rOVF+1}, s{sWS+1}, 0
  s_mov_b32 s{rOVF+2}, {OVFCNT_REL + NCH*4}
  s_mov_b32 s{rOVF+3}, 0x20000""")
A("F_ovf:")
ovf_srd()
A(f"""  v_mov_b32 v{vT+5}, {P_OCNT}
  s_mul_i32 s3, s2, {CH*4}""")
for i in range(4):
    A(f"""  v_cmp_lt_u32 vcc, s58, v{pR+i}
  s_mov_b64 exec, vcc
  s_cbranch_execz F_ov{i}
  ds_add_rtn_u32 v{vT+7}, v{vT+5}, v{vT+4}
  v_lshl_or_b32 v{pE+i}, v{pS+i}, 14, v{pD+i}
  s_waitcnt lgkmcnt(0)
  buffer_store_dword v{pE+i}, v{vT+7}, s[{rOVF}:{rOVF+3}], s3 offen sc1
  s_nop 0
  v_lshlrev_b32 v{pE+i}, 5, v{pB+i}
  v_mov_b32 v{pB+i}, {JUNK//32}
F_ov{i}:
  s_mov_b64 exec, s[40:41]""")
A(f"""  s_waitcnt vmcnt(0)
  s_branch F_ovfdone
F_cnt:
  v_mov_b32 v{vT+5}, {JUNK}
  v_mov_b32 v{vT+6}, 64""")
for i in range(4):
    A(f"""  s_mov_b64 exec, s[40:41]
  v_cmp_le_u32 vcc, v{vT+5}, v{pR+i}
  s_mov_b64 exec, vcc
  ds_or_b32 v{pE+i}, v{vT+6}""")
A(f"""  s_mov_b64 exec, -1
  s_cmp_lg_u32 s{sW}, 0
  s_cbranch_scc1 F_cnt2""")
ovf_srd()
A(f"""  s_lshl_b32 s99, s2, 2
  s_add_u32 s99, s99, {OVFCNT_REL:#x}
  v_mov_b32 v{pB+2}, 0
  v_lshrrev_b32 v{pB}, 2, v{pB}
  s_mov_b64 exec, 1
  buffer_store_dword v{pB}, v{pB+2}, s[{rOVF}:{rOVF+3}], s99 offen sc1
  s_mov_b64 exec, -1
  s_waitcnt vmcnt(0)
F_cnt2:
  s_waitcnt lgkmcnt(0)
  s_barrier
  ds_read_b128 v[{pD}:{pD+3}], v119
  ds_read_b128 v[{pS}:{pS+3}], v119 offset:1024
  s_branch F_cntdone
F_giveup:
  s_waitcnt vmcnt(0)
  s_mov_b64 exec, -1
  v_mov_b32 v{vT+1}, 8
  ds_or_b32 v{cFOUR}, v{vT+1} offset:{L_FLAGS+12}""")
movs(vE, 4, 0)
A(f"""  s_branch F_polled
B_raw:
  s_mov_b32 s50, -1
  s_mov_b32 s51, -1
  s_mov_b32 s52, -1
  s_mov_b32 s53, {(1 << (NCH - 96)) - 1:#x}
  s_mov_b32 s62, 3
B_more:
  s_waitcnt vmcnt(0) lgkmcnt(0)
  s_barrier
  s_ff1_i32_b32 s56, s50
  s_cmp_lg_u32 s50, 0
  s_cbranch_scc0 B_m1
  s_bitset0_b32 s50, s56
  s_branch B_mdone
B_m1:
  s_ff1_i32_b32 s56, s51
  s_cmp_lg_u32 s51, 0
  s_cbranch_scc0 B_m2
  s_bitset0_b32 s51, s56
  s_add_u32 s56, s56, 32
  s_branch B_mdone
B_m2:
  s_ff1_i32_b32 s56, s52
  s_cmp_lg_u32 s52, 0
  s_cbranch_scc0 B_m3
  s_bitset0_b32 s52, s56
  s_add_u32 s56, s56, 64
  s_branch B_mdone
B_m3:
  s_ff1_i32_b32 s56, s53
  s_bitset0_b32 s53, s56
  s_add_u32 s56, s56, 96
B_mdone:
  s_mul_i32 s57, s56, {CH*4}
  s_cmp_eq_u32 s62, 3
  s_cbranch_scc1 B_mraw
  s_mov_b32 s62, 2""")
ovf_srd()
A(f"""  s_lshl_b32 s58, s56, 2
  s_add_u32 s58, s58, {OVFCNT_REL:#x}
  v_mov_b32 v{vT}, 0
  buffer_load_dword v{vT+1}, v{vT}, s[{rOVF}:{rOVF+3}], s58 offen sc1
  buffer_load_dwordx4 v[{vE}:{vE+3}], v{vT16}, s[{rOVF}:{rOVF+3}], s57 offen sc1
  s_waitcnt vmcnt(0)
  v_readfirstlane_b32 s60, v{vT+1}
  s_branch B_mgot
B_mraw:
  s_mov_b64 s[{rOVF}:{rOVF+1}], s[{sDST}:{sDST+1}]
  s_mov_b32 s{rOVF+2}, 1600000
  s_mov_b32 s{rOVF+3}, 0x20000
  buffer_load_dwordx4 v[{vE}:{vE+3}], v{vT16}, s[{rOVF}:{rOVF+3}], s57 offen
  s_waitcnt vmcnt(0)
  s_mov_b64 s[{rOVF}:{rOVF+1}], s[{sSRC}:{sSRC+1}]
  buffer_load_dwordx4 v[{vR}:{vR+3}], v{vT16}, s[{rOVF}:{rOVF+3}], s57 offen
  s_cmp_eq_u32 s56, {NCH-1}
  s_movk_i32 s60, {CH}
  s_cselect_b32 s60, {CHL}, s60
  s_waitcnt vmcnt(0)""")
for i in range(4):
    A(f"  v_lshl_or_b32 v{vE+i}, v{vR+i}, 14, v{vE+i}")
A("B_mgot:")
movs(vD, 8, 0)
A(f"""  v_cmp_gt_u32 vcc, 16, v0
  s_mov_b64 exec, vcc
  ds_write_b128 v{vT16}, v[{vD}:{vD+3}] offset:{L_CNT}
  s_mov_b64 exec, -1
  ds_write_b128 v{vT16}, v[{vD}:{vD+3}] offset:{L_LIST}
  ds_write_b128 v{vT16}, v[{vD}:{vD+3}] offset:49152
  s_mul_i32 s61, s2, {NPB}
  s_sub_u32 s61, s61, 1
  v_lshlrev_b32 v{vT}, 2, v0
  s_min_u32 s60, s60, {CH}""")
for i in range(4):
    A(f"""  v_and_b32 v{vT+1}, 0x3fff, v{vE+i}
  v_subrev_u32 v{vT+1}, s61, v{vT+1}       ; local+1
  v_lshrrev_b32 v{vE+i}, 14, v{vE+i}
  v_lshl_or_b32 v{vE+i}, v{vE+i}, 8, v{vT+1}
  v_add_u32 v{vT+2}, {i}, v{vT}
  v_cmp_gt_u32 vcc, s60, v{vT+2}
  v_add_u32 v{vT+1}, -1, v{vT+1}
  v_cmp_gt_u32 s[56:57], {NPB}, v{vT+1}
  s_and_b64 vcc, vcc, s[56:57]
  s_nop 1
  v_cndmask_b32 v{vE+i}, 0, v{vE+i}, vcc""")
A("""  s_waitcnt lgkmcnt(0)
  s_barrier
  s_branch B_build
F_code_end:""")

A(f"""
.section .rodata,"a"
.p2align 6
.amdhsa_kernel {KN}
  .amdhsa_next_free_vgpr {NV}
  .amdhsa_next_free_sgpr 102
  .amdhsa_accum_offset {(NV+3)//4*4}
  .amdhsa_group_segment_fixed_size 0
  .amdhsa_kernarg_size 64
  .amdhsa_user_sgpr_count 2
  .amdhsa_user_sgpr_kernarg_segment_ptr 1
  .amdhsa_system_sgpr_workgroup_id_x 1
.end_amdhsa_kernel""")
print("\n".join(L))
```

```python
import sys, struct, math

N = 12500; E = 400000
NPB = 49; NB = 256
_o = dict(a.split('=') for a in sys.argv[1:])
CH = int(_o.get('ch', 3136)); NCH = (E + CH - 1) // CH; CHL = E - (NCH - 1) * CH
CELL0 = 2048
CELLROW = NCH * 128 + 128 * int(dict(a.split('=') for a in sys.argv[1:]).get('rp', 5))
WS_OVF = 0x900000
OVFCNT_REL = 0x200000
WS_TS = 0x1000000
TK = [0x00000000, 0x6B400000, 0xD6800000, 0x41C00000]
PADC = 0x7FC00000

opt = dict(t1=4, t2=2, dp=3, pw=0, pn=0, al=0, pad=0, ch=3136, rp=5, so=8, wt=0, noq=0, pp=4, of=1, cw=1, pre=0, xb=0, xn=0, ua=0, ub=0, ql=0, pk=13, pq=0, prio=5, bp=0, xnt=0, xe=1, ts=0, pf=0, pfp=0, pfl=0, limit=40000, slp=2, na=1024)
for a in sys.argv[1:]:
    k, v = a.split("=")
    opt[k] = int(v, 0)

OF = ["", " sc1", " nt", " sc0 sc1"][opt["of"]]
L = []
def A(s):
    for line in s.split("\n"):
        L.append(line)

NS = 784
L_CNT = 50 * NS
L_FLAGS = L_CNT + 256
L_LIST = L_FLAGS + 32
L_QN = L_LIST + 1088 * 16
L_WQ = 65536
L_XO = L_WQ + 32768
L_WV = L_XO + 16384
LDS_TOTAL = L_WV + 32768
P_CNT = 32768
P_OCNT = P_CNT + 1024
JUNK = 36864

sX, sSRC, sDST, sWQ = 4, 6, 8, 10
sWV, sOUT, sDBG, sWS = 64, 66, 68, 70
rX, rOUT, rOVF = 12, 16, 20
sT = 24
sTP = 28
sCM = 32
sEP = 35
sW = 36; sP = 37; sU = 38; sODD = 39
sT64 = 72; sMO = 100; sMQ = 74; sMC = 44; sQL = 73
vT16 = 1; vL16 = 2
cXC, cLQ, cACQ, cIDX = 4, 5, 6, 7
cWF, cBF, cQD, cPO = 8, 9, 10, 11
cS16, cSL, cCMA, cCMB = 12, 13, 14, 15
cAR, cSW, cOUT, cNODE = 16, 17, 18, 19
vLB = 20; vQB = 21
vI = 22; vQA = [24, 26, 28]
vT = 30
vA = 38; vAa = 42; vAb = 46
vD = 50
vQ = 58
vX = [74, 90, 106]
vV = 118; vE = 106; vR = 110; vP = 114
vPF = 122
cL4 = 124; cPAD = 125; cFOUR = 126; cSR = 123-1
NV = 128

KN = "standalone__kernel_systems_refs_featgraph__graph_kernel"
for line in open("standalone__kernel_systems_refs_featgraph__graph.s.ref").read().split("\n"):
    if line.startswith("; Override"): break
    A(line)
A(f"; @launch grid=(256,1,1) block=(1024,1,1) lds={LDS_TOTAL}")
A('.amdgcn_target "amdgcn-amd-amdhsa--gfx950"')
A(".text")
A("""; ---------------------------------------------------------------------------------------------
; out[n] = (sum_{e: dst[e]=n} sigmoid(x[src[e]] . (x[n] @ w_q) / sqrt(128)) * x[src[e]]) @ w_v
;
;     cell (32 slots) per bucket in d_ws; every word carries a per-launch tag (epoch word at
;     that waits too long rebuilds its lists from the raw edge arrays instead.
;  2. every workgroup computes q = x[own nodes] @ w_q (MFMA), counting-sorts its entries by node
;     into 4-edge groups and splits them over 32 streams (2 per wave).
; ---------------------------------------------------------------------------------------------""")

TSR = [80+2*i for i in range(9)] + [22, 76, 78, 0]
def ts(i):
    if opt["ts"]:
        A(f"  s_memrealtime s[{TSR[i]}:{TSR[i]+1}]")

def ts_store(idx):
    if opt["ts"] == 3:
        A(f"""  s_add_u32 s98, s{sWS}, {WS_TS + 0x100000:#x}
  s_addc_u32 s99, s{sWS+1}, 0
  s_lshl_b32 s3, s2, 12
  v_lshlrev_b32 v2, 2, v0
  v_add_u32 v2, s3, v2
  global_store_dword v2, v3, s[98:99]""")
    A("  s_waitcnt lgkmcnt(0)")
    A(f"  s_add_u32 s98, s{sWS}, {WS_TS:#x}")
    A(f"  s_addc_u32 s99, s{sWS+1}, 0")
    A(f"  s_mov_b64 exec, 1")
    A(f"  v_lshrrev_b32 v1, 6, v0")
    A(f"  s_lshl_b32 s3, s2, 4")
    A(f"  v_add_u32 v1, s3, v1")
    A(f"  v_lshlrev_b32 v1, 7, v1")
    for j, i in enumerate(idx):
        A(f"  v_mov_b32 v2, s{TSR[i]}")
        A(f"  v_mov_b32 v3, s{TSR[i]+1}")
        A(f"  global_store_dwordx2 v1, v[2:3], s[98:99] offset:{j*8}")
        A(f"  s_nop 1")

def movs(base, n, val):
    for k in range(n):
        A(f"  v_mov_b32 v{base+k}, {val}")

def zero_fill(z):
    for k in range(4):
        A(f"  ds_write_b128 v{vT16}, v[{z}:{z+3}] offset:{k*16384}")

def dma_w(base, sreg):
    A(f"""  s_lshl_b32 s56, s{sW}, 10
  s_add_u32 m0, s56, {base}
  v_add_u32 v{vT+2}, 0x4000, v2
  global_load_lds_dwordx4 v2, s[{sreg}:{sreg+1}]
  s_add_u32 m0, s56, {base+16384}
  s_nop 0
  global_load_lds_dwordx4 v{vT+2}, s[{sreg}:{sreg+1}]""")

def consts():
    t = vT
    A(f"""  s_and_b32 s56, s{sW}, 3
  s_lshl_b32 s57, s56, 2                   ; T'*4
  s_lshl_b32 s{sT64}, s56, 6               ; T'*64
  s_and_b32 s58, s{sW}, 12
  s_lshl_b32 s58, s58, 2                   ; 16*tile
  v_and_b32 v{t}, 7, v0
  v_lshlrev_b32 v{t}, 4, v{t}              ; u*16
  v_or_b32 v{cXC}, {PADC:#x}, v{t}
  v_add_u32 v{cLQ}, 512, v{t}
  v_and_b32 v{t+1}, 16, v0
  v_add_u32 v{t+1}, v{t+1}, v{t}
  v_subrev_u32 v{cACQ}, 512, v{t+1}
  v_bfe_u32 v{t+1}, v0, 3, 3
  s_xor_b32 s59, s{sW}, {opt["so"]}
  s_lshl_b32 s59, s59, 4
  v_add_u32 v{t+1}, s59, v{t+1}
  v_lshl_add_u32 v119, v{t+1}, 7, v{t}     ; its LDS address
  s_movk_i32 s59, {CELLROW}
  v_mad_u32_u24 v{cPO}, v{t+1}, s59, v{t}
  v_and_b32 v{t+1}, 3, v0                  ; c
  v_mul_u32_u24 v{cIDX}, 0x5555, v{t+1}
  s_lshl_b32 s59, s{sW}, 3
  s_and_b32 s59, s59, 48                   ; 16*(w>>1)
  v_bfe_u32 v{t+2}, v0, 3, 3
  v_mul_u32_u24 v{cSR}, 144, v{t+2}
  v_add_u32 v{cSR}, v{cSR}, v{t}
  v_add_u32 v{t+2}, s59, v{t+2}
  v_lshl_add_u32 v{cOUT}, v{t+2}, 8, v{t}
  v_cmp_gt_u32 vcc, {NPB}, v{t+2}
  v_cmp_gt_u32 s[{sMO}:{sMO+1}], {NPB-8}, v{t+2}
  v_bfrev_b32 v{t+2}, 2
  v_cndmask_b32 v{cOUT}, v{t+2}, v{cOUT}, vcc
  v_and_b32 v{t}, 15, v0                   ; j
  v_xor_b32 v{t+1}, s57, v{t}
  v_and_b32 v{t+2}, 12, v0
  v_and_b32 v{t+3}, 48, v0
  s_mov_b32 s59, {L_WQ}
  v_lshl_add_u32 v{cWF}, v{t+3}, 7, s59
  v_lshl_add_u32 v{cWF}, v{t+2}, 6, v{cWF}
  v_lshl_add_u32 v{cWF}, v{t+1}, 4, v{cWF}
  v_bfe_u32 v{t+1}, v0, 4, 2               ; g
  v_xor_b32 v{t+2}, v{t+1}, v{t}
  v_add_u32 v{t+3}, s58, v{t}              ; node
  s_mov_b32 s59, {L_XO}
  v_lshl_add_u32 v{cBF}, v{t+3}, 8, s59
  v_lshl_add_u32 v{cBF}, v{t+2}, 4, v{cBF}
  v_cmp_gt_u32 s[{sMQ}:{sMQ+1}], {NPB}, v{t+3}
  v_mul_u32_u24 v{t+3}, {NS}, v{t+3}
  s_lshl_b32 s59, s{sW}, 3
  s_and_b32 s59, s59, 48
  v_add_u32 v{t+2}, s59, v{t}
  v_mul_u32_u24 v{t+2}, {NS}, v{t+2}
  v_lshl_add_u32 v{cAR}, v{t+1}, 5, v{t+2}
  v_lshl_add_u32 v{cQD}, v{t+1}, 4, v{t+3}
  v_add_u32 v{cQD}, s{sT64}, v{cQD}
  s_mov_b32 s59, {L_LIST}
  v_lshl_add_u32 v{cSL}, v{t+1}, 2, s59
  v_mul_u32_u24 v{t}, 144, v{t}
  s_mul_i32 s57, s{sW}, 2304
  s_add_u32 s57, s57, s59
  v_lshl_add_u32 v{t}, v{t+1}, 4, v{t}
  v_add_u32 v{cSW}, s57, v{t}
  v_add_u32 v{cSR}, s57, v{cSR}
  v_and_b32 v{t}, 8, v0
  s_lshl_b32 s57, s{sW}, 5
  v_lshl_add_u32 v{cS16}, v{t}, 1, s57
  v_bfe_u32 v{t}, v0, 5, 1
  s_lshl_b32 s57, s{sW}, 3
  v_lshl_add_u32 v{cCMA}, v{t}, 2, s57
  v_and_b32 v{t}, 31, v0
  s_mov_b32 s59, {L_QN-4}
  v_lshl_add_u32 v{cCMB}, v{t}, 2, s59
  v_and_b32 v{t}, 63, v0
  v_mul_u32_u24 v{cNODE}, {NS}, v{t}
  s_mov_b32 s54, 0x400000
  s_mov_b32 s55, 0x3fff00
  s_mov_b32 s62, 0
  s_mov_b32 s48, 0x00ff00ff
  s_mov_b32 s49, 0xff00ff00""")
    movs(vA, 12, 0)
    A(f"""  v_bfe_u32 v{cL4}, v{vT16}, 2, 8
  v_mov_b32 v{cPAD}, {PADC:#x}
  v_mov_b32 v{cFOUR}, 4
  s_mov_b64 s[50:51], 0
  s_mov_b64 s[52:53], 0
  s_mul_i32 s3, s2, {CELLROW}
  v_min_u32 v127, {NCH*128-16}, v{vT16}
  v_add_u32 v127, s3, v127
  s_mov_b32 s61, 0xbe0293ee                ; -log2(e)/sqrt(128)
  s_mov_b32 s60, {opt["limit"]}""")
    if opt["pk"] or opt["pq"]: pf_setup(0)

def dma_x(lbl):
    if opt["noq"]:
        A("  buffer_load_dword v121, v3, s[12:15], 0 offen offset:4000") if False else A("  global_load_dword v121, v2, s[10:11]")
        return
    A(f"""  s_lshl_b32 s56, s{sW}, 10
  s_add_u32 m0, s56, {L_XO}
  s_mul_i32 s57, s2, {NPB*256}
  s_cmp_gt_u32 s{sW}, 12
  s_cbranch_scc1 {lbl}
  buffer_load_dwordx4 v3, s[{rX}:{rX+3}], s57 offen{" nt" if opt["xnt"] else ""} lds
{lbl}:""")

def tags():
    A(f"""  s_add_u32 s{sEP}, s{sEP}, 1
  s_lshl_b32 s{sT}, s{sEP}, 22""")
    for k in range(1, 4):
        A(f"  s_xor_b32 s{sT+k}, s{sT}, {TK[k]:#x}")

NA = opt["na"]
NP = (25000 - 16 * NA + 15) // 16
def prefetch(grpP, lbl):
    n = NP if grpP else NA
    if n <= 0:
        return 0
    A(f"  s_lshr_b32 s3, s2, 3")
    if grpP:
        A(f"  s_mul_i32 s3, s3, {NP*128}")
        A(f"  s_add_u32 s3, s3, {16*NA*128}")
    else:
        A(f"  s_sub_u32 s3, s3, 16")
        A(f"  s_mul_i32 s3, s3, {NA*128}")
    A(f"  v_lshlrev_b32 v123, 7, v0")
    done = 0
    while done < n:
        m = min(1024, n - done)
        if m < 1024:
            A(f"""  v_mov_b32 v{vPF}, {m}
  v_cmp_gt_u32 vcc, v{vPF}, v0
  s_mov_b64 exec, vcc
  s_cbranch_execz {lbl}""")
        A(f"  buffer_load_dword v2, v123, s[{rX}:{rX+3}], s3 offen")
        done += m
        if done < n:
            A(f"  s_add_u32 s3, s3, {1024*128}")
    A(f"{lbl}:\n  s_mov_b64 exec, -1")

def pf_setup(K):
    A(f"""  s_lshr_b32 s3, s2, 3
  s_mul_i32 s3, s3, 400
  s_mul_i32 s56, s{sW}, 25
  s_add_u32 s3, s3, s56
  s_lshl_b32 s98, s3, 7
  v_lshlrev_b32 v123, 5, v{cL4}""")

def pf_issue(lo, hi):
    m = ((1 << hi) - 1) ^ ((1 << lo) - 1)
    A(f"""  s_mov_b32 exec_lo, {m & 0xffffffff:#x}
  s_mov_b32 exec_hi, {m >> 32:#x}
  buffer_load_dword v2, v123, s[{rX}:{rX+3}], s98 offen
  s_mov_b64 exec, -1""")

def upf(K, skip, lbl):
    m = (1 << K) - 1
    A(f"""  s_cmp_lt_u32 s2, 128
  s_cbranch_scc1 {lbl}
  s_lshr_b32 s3, s2, 3
  s_mul_i32 s3, s3, 784
  s_mul_i32 s56, s{sW}, 49
  s_add_u32 s3, s3, s56
  s_add_u32 s3, s3, {skip}
  s_lshl_b32 s3, s3, 7
  v_lshlrev_b32 v123, 5, v{cL4}
  s_mov_b32 exec_lo, {m & 0xffffffff:#x}
  s_mov_b32 exec_hi, {m >> 32:#x}
  buffer_load_dword v2, v123, s[{rX}:{rX+3}], s3 offen
  s_mov_b64 exec, -1
{lbl}:""")

def w_frag_reads(addr, base, s, off=0):
    for b in range(2):
        r = base + (b*4+s)*4
        A(f"  ds_read_b64_tr_b16 v[{r}:{r+1}], v{addr} offset:{off + s*8192 + 8*b}")
        A(f"  ds_read_b64_tr_b16 v[{r+2}:{r+3}], v{addr} offset:{off + s*8192 + 1024 + 8*b}")

A(f"""
.globl {KN}
.p2align 8
.type {KN},@function
{KN}:""")
ts(0)
pD, pS, pB, pE, pR = 74, 78, 82, 86, 90
A(f"""  s_load_dwordx8 s[4:11], s[0:1], 0
  s_load_dwordx8 s[64:71], s[0:1], 32
  s_cmp_ge_u32 s2, 256
  s_cbranch_scc1 B_done
  v_lshlrev_b32 v{vT16}, 4, v0
  v_readfirstlane_b32 s{sW}, v0
  v_lshlrev_b32 v2, 2, v0
  v_and_b32 v2, 0xc0, v2
  v_xor_b32 v2, v2, v{vT16}
  v_and_b32 v3, 0xf0, v0
  v_xor_b32 v3, v3, v{vT16}
  s_lshr_b32 s{sW}, s{sW}, 6
  s_mov_b32 s{rX+2}, {N*256}
  s_mov_b32 s{rX+3}, 0x20000""")
if opt["cw"]:
    A(f"""  s_cmp_lt_u32 s{sW}, 14
  s_cbranch_scc1 F_nocw
  s_getpc_b64 s[98:99]
F_pc:
  v_and_b32 v120, 127, v0
  v_lshlrev_b32 v120, 7, v120
  v_min_u32 v120, F_code_end-F_pc-4, v120
  global_load_dword v121, v120, s[98:99]
F_nocw:""")
movs(vD, 4, 0)
A(f"""  s_cmp_ge_u32 s2, {NCH}
  s_cbranch_scc1 F_nopart
  s_mul_i32 s3, s2, {CH*4}
  v_add_u32 v{vT}, s3, v{vT16}
  s_cmp_eq_u32 s2, {NCH-1}
  s_movk_i32 s3, {CH//4}
  s_cselect_b32 s3, {CHL//4}, s3
  v_cmp_gt_u32 s[40:41], s3, v0""")
movs(vD+4, 4, -1)
A(f"""  s_mov_b64 exec, s[40:41]
  s_waitcnt lgkmcnt(0)
  s_cbranch_execz F_noload
  global_load_dwordx4 v[{pD}:{pD+3}], v{vT}, s[{sDST}:{sDST+1}] nt
  global_load_dwordx4 v[{pS}:{pS+3}], v{vT}, s[{sSRC}:{sSRC+1}] nt
F_noload:
  s_mov_b64 exec, -1
  ds_write_b128 v{vT16}, v[{vD+4}:{vD+7}]
  ds_write_b128 v{vT16}, v[{vD+4}:{vD+7}] offset:16384
  ds_write_b128 v{vT16}, v[{vD}:{vD+3}] offset:32768
  s_mov_b64 s[{rX}:{rX+1}], s[{sX}:{sX+1}]
  s_waitcnt lgkmcnt(0)
  s_load_dword s{sEP}, s[{sWS}:{sWS+1}], 0
  s_barrier""")
ts(9)
if opt["xb"]: dma_x("F_nx0")
dma_w(L_WQ, sWQ)
consts()
A(f"""  s_mov_b64 exec, s[40:41]
  s_cbranch_execz {"F_placed" if opt["xb"] else "F_idle"}
  s_movk_i32 s58, 21400
  v_mov_b32 v{vT+4}, 4
  s_movk_i32 s59, -49
  s_waitcnt vmcnt({4 if opt["xb"] else 3})""")
ts(10)
for i in range(4):
    A(f"  v_mul_u32_u24 v{pB+i}, s58, v{pD+i}")
for i in range(4):
    A(f"  v_lshrrev_b32 v{pB+i}, 20, v{pB+i}")
for i in range(4):
    A(f"  v_mad_i32_i24 v{pE+i}, v{pB+i}, s59, v{pD+i}")
    A(f"  v_lshlrev_b32 v{pB+i}, 2, v{pB+i}")
    A(f"  ds_add_rtn_u32 v{pR+i}, v{pB+i}, v{vT+4} offset:{P_CNT}")
A(f"  s_waitcnt vmcnt({3 if opt['xb'] else 2})")
if not opt["ql"] and not opt["xb"]:
    A("  s_mov_b64 exec, -1")
    dma_x("F_nx0")
    A("  s_mov_b64 exec, s[40:41]")
ts(11)
for i in range(4):
    A(f"  v_lshl_add_u32 v{pE+i}, v{pS+i}, 8, v{pE+i}")
A("  s_movk_i32 s58, 124")
A("  s_waitcnt lgkmcnt(0)")
A(f"  v_max3_u32 v{vT+5}, v{pR}, v{pR+1}, v{pR+2}")
A(f"  v_max_u32 v{vT+5}, v{vT+5}, v{pR+3}")
A(f"  v_cmp_lt_u32 vcc, s58, v{vT+5}")
A(f"  s_cbranch_vccnz F_ovf") if False else A("  s_cmp_lg_u64 vcc, 0\n  s_cbranch_scc1 F_ovf")
A("F_ovfdone:")
for i in range(4):
    A(f"  v_add_u32 v{pR+i}, v{pR+i}, v{pB+i}")
    A(f"  v_and_b32 v{pR+i}, s58, v{pR+i}")
    A(f"  v_lshl_add_u32 v{pR+i}, v{pB+i}, 5, v{pR+i}")
    A(f"  ds_write_b32 v{pR+i}, v{pE+i}")
A(f"""F_placed:
  s_mov_b64 exec, -1
  v_mov_b32 v{vT+4}, {P_OCNT}
  s_waitcnt lgkmcnt(0)
  s_barrier
  {"s_memrealtime s[0:1]" if opt["ts"] else ""}
  ds_read_b32 v{pB}, v{vT+4}
  ds_read_b128 v[{pD}:{pD+3}], v119
  ds_read_b128 v[{pS}:{pS+3}], v119 offset:1024""")
tags()
for k in range(4):
    A(f"  s_add_u32 s{sTP+k}, s{sT+k}, 1")
A(f"""  s_lshl_b32 s3, s2, 7
  s_add_u32 s56, s{sWS}, s3
  s_addc_u32 s57, s{sWS+1}, 0
  s_add_u32 s58, s56, {8*CELLROW}
  s_addc_u32 s59, s57, 0
  s_waitcnt lgkmcnt(2)
  v_readfirstlane_b32 s99, v{pB}
  s_cmp_lg_u32 s99, 0
  s_cbranch_scc1 F_cnt
F_cntdone:
  s_waitcnt lgkmcnt(1)""")
for k in range(4):
    A(f"  v_add_u32 v{pD+k}, s{sTP+k}, v{pD+k}")
A(f"  global_store_dwordx4 v{cPO}, v[{pD}:{pD+3}], s[56:57] offset:{CELL0} sc1")
A("  s_waitcnt lgkmcnt(0)")
for k in range(4):
    A(f"  v_add_u32 v{pS+k}, s{sTP+k}, v{pS+k}")
A(f"  global_store_dwordx4 v{cPO}, v[{pS}:{pS+3}], s[58:59] offset:{CELL0} sc1")
ts(1)
if opt["ql"]:
    dma_x("F_nx0")
    zero_fill(vD)
    dma_w(L_WV, sWV)
    A(f"  s_mov_b32 s{sQL}, 1")
    A("  s_waitcnt lgkmcnt(0)\n  s_barrier")
    ts(2)
    A(f"""  global_load_dwordx4 v[{vE}:{vE+3}], v127, s[{sWS}:{sWS+1}] offset:{CELL0} sc1
  s_branch F_wait""")
else:
    A(f"""  ds_write_b128 v119, v[{vD}:{vD+3}]
  ds_write_b128 v119, v[{vD}:{vD+3}] offset:1024
  ds_write_b128 v{vT16}, v[{vD}:{vD+3}] offset:32768
  ds_write_b128 v{vT16}, v[{vD}:{vD+3}] offset:49152""")
    A(f"  s_mov_b32 s{sQL}, 0")
    A(f"  s_waitcnt vmcnt(2) lgkmcnt(0)\n  s_barrier")
A(f"""  s_branch F_join
F_nopart:""")
A(f"""  s_waitcnt lgkmcnt(0)
  s_load_dword s{sEP}, s[{sWS}:{sWS+1}], 0
  s_mov_b64 s[{rX}:{rX+1}], s[{sX}:{sX+1}]""")
if opt["xn"]: dma_x("F_nx1")
dma_w(L_WQ, sWQ)
zero_fill(vD)
consts()
if not opt["xn"]:
    A("  s_waitcnt vmcnt(0)")
    ts(9)
    dma_x("F_nx1")
if opt["pf"] and not opt["pfl"]:
    assert NA % 1024 == 0
    A("  s_cmp_lt_u32 s2, 128\n  s_cbranch_scc1 F_pfx")
    prefetch(False, "F_pf0")
    A(f"  s_waitcnt vmcnt({NA//1024}) lgkmcnt(0)")
    A("  s_branch F_z\nF_pfx:")
A("  s_waitcnt vmcnt(0) lgkmcnt(0)")
A("F_z:")
A(f"  s_mov_b32 s{sQL}, 0")
tags()
A("  s_barrier")
if opt["pfp"] or (opt["pf"] and opt["pfl"]):
    A("  s_cmp_ge_u32 s2, 128\n  s_cbranch_scc1 F_late")
    if opt["pfp"]: prefetch(True, "F_pfq")
    A("  s_branch F_join\nF_late:")
    if opt["pf"] and opt["pfl"]:
        prefetch(False, "F_pf0")
ts(1)
A("F_join:")
ts(2)
dma_w(L_WV, sWV)
if opt["ua"]: upf(opt["ua"], 0, "F_ua")
if opt["pq"]: pf_issue(0, opt["pq"])
FA = 74; FB = 58
def q_compute(mid=None):
    for s in range(4):
        w_frag_reads(cWF, FA, s)
        if s:
            A(f"  v_xor_b32 v{vI+s-1}, {s*64}, v{cBF}")
            A(f"  ds_read_b128 v[{FB+4*s}:{FB+4*s+3}], v{vI+s-1}")
        else:
            A(f"  ds_read_b128 v[{FB}:{FB+3}], v{cBF}")
    for s in range(4):
        A(f"  s_waitcnt lgkmcnt({min(15,(3-s)*5)})")
        for b in range(2):
            d = vD + 4*b
            a = FA + (b*4+s)*4
            c = "0" if s == 0 else f"v[{d}:{d+3}]"
            A(f"  v_mfma_f32_16x16x32_bf16 v[{d}:{d+3}], v[{a}:{a+3}], v[{FB+4*s}:{FB+4*s+3}], {c}")
    if mid: mid()
    A(f"  s_mov_b64 exec, s[{sMQ}:{sMQ+1}]")
    A("  s_nop 6")
    for k in range(0, 8, 2):
        A(f"  v_pk_mul_f32 v[{vD+k}:{vD+k+1}], v[{vD+k}:{vD+k+1}], s[60:61] op_sel:[0,1] op_sel_hi:[1,1]")
    for k in range(4):
        A(f"  v_cvt_pk_bf16_f32 v{FB+k}, v{vD+2*k}, v{vD+2*k+1}")
    A(f"  ds_write_b128 v{cQD}, v[{FB}:{FB+3}] offset:{NS+512}")
    A("  s_mov_b64 exec, -1")
    for k in range(0, 8, 2):
        A(f"  v_mov_b64 v[{vD+k}:{vD+k+1}], 0")

def first_poll():
    if opt["wt"]:
        A(f"""F_wt:
  s_memrealtime s[98:99]
  s_waitcnt lgkmcnt(0)
  s_sub_u32 s98, s98, s80
  s_cmp_lt_u32 s98, {opt["wt"]}
  s_cbranch_scc1 F_wt""")
    if opt["pre"]:
        A(f"  s_cmp_lt_u32 s2, 125\n  s_cbranch_scc1 F_nopre\n  s_sleep {opt['pre']}\nF_nopre:")
    if opt["ub"]: upf(opt["ub"], opt["ua"], "F_ub")
    A(f"""  global_load_dwordx4 v[{vE}:{vE+3}], v127, s[{sWS}:{sWS+1}] offset:{CELL0} sc1""")

if opt["noq"]:
    movs(vD, 8, 0)
    if opt["noq"] == 1: A(f"""  s_mov_b64 exec, 0xff
F_pre:
  global_load_dwordx4 v[{vE}:{vE+3}], v127, s[{sWS}:{sWS+1}] offset:{CELL0} sc1
  s_waitcnt vmcnt(0)
  v_xor_b32 v{vT}, s{sT}, v{vE}
  v_cmp_le_u32 vcc, s54, v{vT}
  s_cmp_eq_u64 vcc, 0
  s_cbranch_scc1 F_pre2
  s_sleep 4
  s_branch F_pre
F_pre2:""")
    first_poll()
else:
    q_compute(first_poll)
if opt["pw"] == 1:
    A(f"""  s_cmp_gt_u32 s{sW}, 7
  s_cbranch_scc1 F_nopw
  s_mov_b64 s[{rOUT}:{rOUT+1}], s[{sOUT}:{sOUT+1}]
  s_mov_b32 s{rOUT+2}, {N*256}
  s_mov_b32 s{rOUT+3}, 0x20000
  s_mul_i32 s3, s2, {NPB*256}
  s_and_b32 s56, s{sW}, 1
  s_lshl_b32 s56, s56, 7
  s_add_u32 s3, s3, s56
  buffer_store_dwordx4 v[{vD}:{vD+3}], v{cOUT}, s[{rOUT}:{rOUT+3}], s3 offen sc1
  s_mov_b64 exec, s[{sMO}:{sMO+1}]
  buffer_store_dwordx4 v[{vD}:{vD+3}], v{cOUT}, s[{rOUT}:{rOUT+3}], s3 offen offset:2048 sc1
  s_mov_b64 exec, -1
F_nopw:""")
A("F_wait:")
ts(3)
PL = f"  global_load_dwordx4 v[{vE}:{vE+3}], v127, s[{sWS}:{sWS+1}] offset:{CELL0} sc1"
CHK = f"""  v_xor_b32 v{vT}, s{sT}, v{vE}
  v_bitop3_b32 v{vT}, v{vE+1}, s{sT+1}, v{vT} bitop3:0xbe
  v_bitop3_b32 v{vT}, v{vE+2}, s{sT+2}, v{vT} bitop3:0xbe
  v_bitop3_b32 v{vT}, v{vE+3}, s{sT+3}, v{vT} bitop3:0xbe
  v_cmp_le_u32 vcc, s54, v{vT}
  s_mov_b64 exec, vcc"""
if not opt["pp"]:
    A(f"""  s_branch F_polltest
F_poll:
  s_sleep {opt["slp"]}
  s_sub_u32 s60, s60, 1
  s_cbranch_scc1 F_giveup
{PL}
F_polltest:
  s_waitcnt vmcnt(0)
{CHK}
  s_cbranch_execnz F_poll
F_polled:
  s_mov_b64 exec, -1""")
else:
    A(f"""  s_waitcnt vmcnt(0)
{CHK}
  s_cbranch_execz F_polled
{PL}
F_poll:
  s_sleep {opt["pp"]}
  s_sub_u32 s60, s60, 1
  s_cbranch_scc1 F_giveup
{PL}
  s_waitcnt vmcnt(1)
{CHK}
  s_cbranch_execnz F_poll
F_polled:
  s_mov_b64 exec, -1""")
if opt["pn"]:
    K = opt["pn"]
    m = (1 << K) - 1
    A(f"""  s_cmp_lt_u32 s2, 128
  s_cbranch_scc1 F_nopn
  s_lshr_b32 s3, s2, 3
  s_sub_u32 s3, s3, 16
  s_lshl_b32 s3, s3, 4
  s_add_u32 s3, s3, s{sW}
  s_mul_i32 s3, s3, {K*128}
  v_lshlrev_b32 v123, 5, v{cL4}
  s_mov_b32 exec_lo, {m & 0xffffffff:#x}
  s_mov_b32 exec_hi, {m >> 32:#x}
  buffer_load_dword v2, v123, s[{rX}:{rX+3}], s3 offen
  s_mov_b64 exec, -1
F_nopn:""")
elif opt["pk"]: pf_issue(opt["pq"], opt["pk"])
ts(4)
if NCH < 128:
    A(f"""  v_cmp_le_u32 vcc, {NCH*8}, v0
  s_mov_b64 exec, vcc""")
    movs(vE, 4, 0)
    A("  s_mov_b64 exec, -1")
A("B_build:")
for i in range(4):
    A(f"  v_lshlrev_b32_sdwa v{vP+i}, 2, v{vE+i} dst_sel:DWORD dst_unused:UNUSED_PAD src0_sel:DWORD src1_sel:BYTE_0")
A(f"  v_max3_u32 v{vT}, v{vP}, v{vP+1}, v{vP+2}")
A(f"  v_max_u32 v{vT}, v{vT}, v{vP+3}")
A(f"  v_cmp_lt_u32 vcc, 0xf8, v{vT}")
A(f"  s_cmp_lg_u64 vcc, 0\n  s_cbranch_scc1 B_mark\nB_nomark:")
for i in range(4):
    A(f"  v_cmp_ne_u32 s[{40+2*i}:{41+2*i}], 0, v{vP+i}")
for i in range(4):
    A(f"  s_mov_b64 exec, s[{40+2*i}:{41+2*i}]")
    A(f"  ds_add_rtn_u32 v{vR+i}, v{vP+i}, v{cFOUR} offset:{L_CNT}")
A("  s_mov_b64 exec, -1")
for i in range(4):
    A(f"  v_bitop3_b32 v{vV+i}, v{vE+i}, s55, v{cPAD} bitop3:0x6a")
A(f"""  s_waitcnt lgkmcnt(0)
  s_barrier
  ds_read_b32 v{vT+1}, v{cL4} offset:{L_CNT}
  ds_read_b32 v{vT+7}, v{cFOUR} offset:{L_FLAGS+12}
  s_cmp_lg_u32 s{sQL}, 0
  s_cbranch_scc1 B_lateq
B_lateq_ret:
  s_lshl_b32 s58, s{sW}, 2
  s_mov_b32 s59, s{sW}
  s_waitcnt lgkmcnt(1)
  v_add_u32 v{vT+1}, 12, v{vT+1}
  v_lshrrev_b32 v{vT+1}, 4, v{vT+1}        ; nq
  s_nop 1
  v_add_u32_dpp v{vT+2}, v{vT+1}, v{vT+1} row_shr:1 row_mask:0xf bank_mask:0xf bound_ctrl:0
  s_nop 1
  v_add_u32_dpp v{vT+2}, v{vT+2}, v{vT+2} row_shr:2 row_mask:0xf bank_mask:0xf
  s_nop 1
  v_add_u32_dpp v{vT+2}, v{vT+2}, v{vT+2} row_shr:4 row_mask:0xf bank_mask:0xf
  s_nop 1
  v_add_u32_dpp v{vT+2}, v{vT+2}, v{vT+2} row_shr:8 row_mask:0xf bank_mask:0xf
  s_nop 1
  v_add_u32_dpp v{vT+2}, v{vT+2}, v{vT+2} row_bcast:15 row_mask:0xa bank_mask:0xf
  s_nop 1
  v_add_u32_dpp v{vT+2}, v{vT+2}, v{vT+2} row_bcast:31 row_mask:0xc bank_mask:0xf
  s_nop 0
  v_sub_u32 v{vT}, v{vT+2}, v{vT+1}        ; qstart
  v_readlane_b32 s{sP}, v{vT+2}, 63        ; T4
  v_lshlrev_b32 v{vT+2}, 4, v{vT}          ; qstart*16""")
for i in range(4):
    A(f"  ds_bpermute_b32 v{vP+i}, v{vP+i}, v{vT+2}")
A(f"""  v_lshl_add_u32 v{vT}, v{vT}, 2, s58
  s_add_u32 s{sP}, s{sP}, 31
  s_lshr_b32 s{sP}, s{sP}, 5
B_qn:
  v_cmp_lt_u32 vcc, s59, v{vT+1}
  s_add_u32 s59, s59, 16
  v_cmp_lt_u32 s[56:57], s59, v{vT+1}
  s_mov_b64 exec, vcc
  ds_write_b32 v{vT}, v{cNODE} offset:{L_QN}
  s_mov_b64 exec, -1
  s_cmp_lg_u64 s[56:57], 0
  s_cbranch_scc1 B_qnmore
  v_cmp_lt_u32 vcc, s{sP}, v{vT+1}
  s_mov_b32 s63, s62
  s_cmp_lg_u64 vcc, 0
  s_cbranch_scc1 B_mode
B_modedone:
  v_mad_u32_u24 v{vLB}, v{cS16}, s{sP}, v{cSL}
  v_mul_u32_u24 v{vQB}, s{sP}, v{cS16}
  v_mad_u32_u24 v{vT}, v{cCMA}, s{sP}, v{cCMB}
  v_lshrrev_b32 v{vQB}, 2, v{vQB}
  s_waitcnt lgkmcnt(0)""")
for i in range(4):
    A(f"  v_add_u32 v{vR+i}, v{vR+i}, v{vP+i}")
for i in range(4):
    A(f"  s_mov_b64 exec, s[{40+2*i}:{41+2*i}]")
    A(f"  ds_write_b32 v{vR+i}, v{vV+i} offset:{L_LIST}")
A(f"""  s_mov_b64 exec, -1
  v_readfirstlane_b32 s56, v{vT+7}
  s_cmp_lg_u32 s56, 0
  s_cbranch_scc1 B_flags
B_noflags:
  s_cmp_gt_u32 s{sP}, 32
  s_cbranch_scc1 B_raw""")
MID = opt["dp"] == 3
DP = 1 if MID else opt["dp"]
A(f"""  s_add_u32 s{sU}, s{sP}, 1
  s_lshr_b32 s{sU}, s{sU}, 1
  s_and_b32 s{sODD}, s{sP}, 1
  s_mul_i32 s57, s{sODD}, {2 if MID else DP}             ; units-left value at which the unit being fetched has a single pair
  s_cmp_le_u32 s{sP}, {3 if MID else 2*DP-1}
  {"s_setprio 3" if opt["prio"] else ""}
  s_waitcnt lgkmcnt(0)
  s_barrier""")
ts(5)
if opt["ts"]: A("  s_memtime s[76:77]")
A(f"""  ds_read2_b32 v[{vI}:{vI+1}], v{vLB} offset0:0 offset1:4
  v_add_u32 v{vQB}, {L_QN}, v{vQB}""")
if DP == 2:
    A(f"  ds_read2_b32 v[{vT+4}:{vT+5}], v{vLB} offset0:8 offset1:12")
A(f"""  ds_read2_b32 v[{vQA[0]}:{vQA[0]+1}], v{vQB} offset0:0 offset1:1
  ds_read2_b32 v[{vT+2}:{vT+3}], v{vT} offset0:0 offset1:1
  s_cbranch_scc1 B_small""")

def loads_a(x, i):
    return (f"  v_xor_b32 v{i}, v{i}, v{cXC}\n"
            f"  buffer_load_dwordx4 v[{x}:{x+3}], v{i}, s[{rX}:{rX+3}], 0 offen\n"
            f"  buffer_load_dwordx4 v[{x+8}:{x+11}], v{i}, s[{rX}:{rX+3}], 0 offen offset:128")
def loads_b(x, i):
    return (f"  v_xor_b32 v{i}, v{i}, v{cXC}\n"
            f"  buffer_load_dwordx4 v[{x+4}:{x+7}], v{i}, s[{rX}:{rX+3}], 0 offen\n"
            f"  buffer_load_dwordx4 v[{x+12}:{x+15}], v{i}, s[{rX}:{rX+3}], 0 offen offset:128")
def q_reads(q):
    A(f"  v_add_u32 v{q}, v{q}, v{cLQ}")
    A(f"  v_add_u32 v{q+1}, v{q+1}, v{cLQ}")
    A(f"  ds_read_b128 v[{vQ}:{vQ+3}], v{q}")
    A(f"  ds_read_b128 v[{vQ+4}:{vQ+7}], v{q+1}")
    A(f"  ds_read_b128 v[{vQ+8}:{vQ+11}], v{q} offset:128")
    A(f"  ds_read_b128 v[{vQ+12}:{vQ+15}], v{q+1} offset:128")

A(f"B_start:\n  s_waitcnt lgkmcnt({DP+1})")
A(loads_a(vX[0], vI)); A(loads_b(vX[0], vI+1))
if DP == 2:
    if opt["prio"] == 7: A("  s_setprio 2")
    A("  s_waitcnt lgkmcnt(2)")
    A(loads_a(vX[1], vT+4)); A(loads_b(vX[1], vT+5))
A("B_started:")
A("  s_waitcnt lgkmcnt(0)")
A(f"  v_cmp_ne_u32 s[{sCM}:{sCM+1}], v{vT+2}, v{vT+3}")
q_reads(vQA[0])
A(f"""  s_bitset0_b32 s{sCM}, 0
  s_bitset0_b32 s{sCM+1}, 0
  s_or_b32 s34, s{sCM}, s{sCM+1}""")

ool = []
def flush_block(lbl, qa, bit):
    s = f"""{lbl}:
  s_bitcmp1_b32 s{sCM}, {bit}
  s_cselect_b32 exec_lo, s48, 0
  s_bitcmp1_b32 s{sCM+1}, {bit}
  s_cselect_b32 exec_hi, s49, 0
  v_add_u32 v{vT+4}, v{qa}, v{cACQ}
  s_cmp_ge_u32 s63, 2
  s_cbranch_scc1 {lbl}_at
  s_nop 2
  ds_write_b128 v{vT+4}, v[{vD}:{vD+3}]
  ds_write_b128 v{vT+4}, v[{vD+4}:{vD+7}] offset:256
{lbl}_z:
  s_nop 1
"""
    for k in range(0, 8, 2):
        s += f"  v_mov_b64 v[{vD+k}:{vD+k+1}], 0\n"
    s += "  s_mov_b64 exec, -1\n"
    tail = f"{lbl}_at:\n  s_nop 2\n"
    for k in range(8):
        tail += f"  ds_add_f32 v{vT+4}, v{vD+k} offset:{(k//4)*256 + (k%4)*4}\n"
    tail += f"  s_branch {lbl}_z\n"
    return s, tail

def smf(a, x):
    return (f"  v_smfmac_f32_16x16x64_bf16 v[{vD}:{vD+3}], v[{a}:{a+3}], v[{x}:{x+7}], v{cIDX}\n"
            f"  v_smfmac_f32_16x16x64_bf16 v[{vD+4}:{vD+7}], v[{a}:{a+3}], v[{x+8}:{x+15}], v{cIDX}")

def abuild(a, r, rowmask):
    return (f"  v_mov_b32_dpp v{a}, v{r} quad_perm:[0,1,2,3] row_mask:{rowmask:#x} bank_mask:0x5\n"
            f"  v_mov_b32_dpp v{a+1}, v{r} row_half_mirror row_mask:{rowmask:#x} bank_mask:0xa\n"
            f"  v_mov_b32_dpp v{a+2}, v{r} row_half_mirror row_mask:{rowmask:#x} bank_mask:0x5\n"
            f"  v_mov_b32_dpp v{a+3}, v{r} quad_perm:[0,1,2,3] row_mask:{rowmask:#x} bank_mask:0xa")

SH = f"  s_lshr_b32 s34, s34, 2\n  s_lshr_b32 s{sCM}, s{sCM}, 2\n  s_lshr_b32 s{sCM+1}, s{sCM+1}, 2"
def body(n):
    x = vX[n % (2 if MID else DP)]
    xo = vX[1-n]
    qa = vQA[n]; qn = vQA[1-n]
    r = vT + 2
    pa, pb = vT, vT + 1
    A(f"B_u{n}:")
    if opt["ts"] == 3:
        A(f"  s_memrealtime s[96:97]\n  s_mov_b32 m0, s{sU}\n  s_waitcnt lgkmcnt(0)\n  v_writelane_b32 v3, s96, m0")
    A(f"  s_bitcmp1_b32 s34, 0")
    A(f"  s_cbranch_scc1 B_fa{n}")
    A(f"B_fa{n}_ret:")
    s, t = flush_block(f"B_fa{n}", qn + 1, 0)
    ool.append(s + f"  s_branch B_fa{n}_ret\n" + t)
    A(f"  ds_read2_b32 v[{qn}:{qn+1}], v{vQB} offset0:{2+2*n} offset1:{3+2*n}")
    A(f"  ds_read2_b32 v[{vI}:{vI+1}], v{vLB} offset0:{8*(DP+n)} offset1:{8*(DP+n)+4}")
    A(f"  s_cmp_le_u32 s{sU}, {DP}")
    A(f"  s_cbranch_scc1 B_nl{n}")
    A(f"  s_waitcnt vmcnt({4*(DP-1)}) lgkmcnt(2)")
    A(f"B_go{n}:")
    if opt["ts"] == 3:
        A(f"  s_memrealtime s[96:97]\n  s_add_u32 m0, s{sU}, 8\n  s_waitcnt lgkmcnt(0)\n  v_writelane_b32 v3, s96, m0")
    nl = f"B_nl{n}:\n"
    if DP == 2:
        nl += f"""  s_cmp_eq_u32 s{sU}, 1
  s_cbranch_scc1 B_nl{n}_last
  s_waitcnt vmcnt(2) lgkmcnt(2)
  s_branch B_go{n}
B_nl{n}_last:
"""
    nl += f"""  s_lshl_b32 s56, s{sODD}, 1
  s_or_b32 s34, s34, s56
  s_waitcnt vmcnt(0) lgkmcnt(2)
  s_branch B_go{n}
"""
    ool.append(nl)
    order = [(0, 4), (1, 5), (2, 6), (3, 7), (8, 12), (9, 13), (10, 14), (11, 15)]
    for k, (ia, ib) in enumerate(order):
        ca = "0" if k == 0 else f"v{pa}"
        cb = "0" if k == 0 else f"v{pb}"
        A(f"  v_dot2_f32_bf16 v{pa}, v{x+ia}, v{vQ+ia}, {ca}")
        A(f"  v_dot2_f32_bf16 v{pb}, v{x+ib}, v{vQ+ib}, {cb}")
    A("  s_waitcnt lgkmcnt(0)")
    if MID:
        A(f"  s_cmp_le_u32 s{sU}, 1")
        A(f"  s_cbranch_scc1 B_md{n}")
        A(f"  s_cmp_eq_u32 s{sU}, s57")
        A(loads_a(xo, vI))
        A(f"  s_cbranch_scc1 B_md{n}")
        A(loads_b(xo, vI+1))
        A(f"B_md{n}:")
    q_reads(qn)
    A(f"  v_permlane32_swap_b32 v{pa}, v{pb}")
    if n == 1:
        A(f"  v_add_u32 v{vLB}, 64, v{vLB}")
        A(f"  v_add_u32 v{vQB}, 16, v{vQB}")
    else:
        A("  s_nop 1")
    A(f"  v_permlane16_swap_b32 v{pa}, v{pb}")
    A(f"  s_nop 1")
    A(f"  v_add_f32_dpp v{r}, v{pa}, v{pa} row_half_mirror row_mask:0xf bank_mask:0x5")
    A(f"  v_add_f32_dpp v{r}, v{pb}, v{pb} row_half_mirror row_mask:0xf bank_mask:0xa")
    if MID:
        A("  s_nop 1")
    else:
        A(f"  v_xor_b32 v{vI}, v{vI}, v{cXC}")
        A(f"  v_xor_b32 v{vI+1}, v{vI+1}, v{cXC}")
    A(f"  v_add_f32_dpp v{r}, v{r}, v{r} quad_perm:[1,0,3,2] row_mask:0xf bank_mask:0xf")
    A(f"  s_nop 1")
    A(f"  v_add_f32_dpp v{r}, v{r}, v{r} quad_perm:[2,3,0,1] row_mask:0xf bank_mask:0xf")
    A(f"  v_exp_f32 v{r}, v{r}")
    A(f"  s_nop 0")
    A(f"  v_add_f32 v{r}, 1.0, v{r}")
    A(f"  v_rcp_f32 v{r}, v{r}")
    A(f"  s_bitcmp1_b32 s34, 1")
    A(f"  v_cvt_pk_bf16_f32 v{r}, v{r}, 0")
    A(f"  s_cbranch_scc1 B_sp{n}")
    A(f"  s_sub_u32 s{sU}, s{sU}, 1")
    A(abuild(vA, r, 0xf))
    A(SH)
    A(smf(vA, x))
    A(f"B_sp{n}_ret:")
    A(f"  s_cmp_lt_u32 s{sU}, {DP}")
    A(f"  s_cbranch_scc1 B_nf{n}")
    if opt["prio"] in (5, 7):
        A(f"""  s_setprio 2
  s_cmp_gt_u32 s{sU}, {opt["t1"]}
  s_cbranch_scc1 B_pp{n}
  s_setprio 1
  s_cmp_gt_u32 s{sU}, {opt["t2"]}
  s_cbranch_scc1 B_pp{n}
  s_setprio 0
B_pp{n}:""")
    if not MID:
        A(f"  s_cmp_eq_u32 s{sU}, s57")
        A(f"  buffer_load_dwordx4 v[{x}:{x+3}], v{vI}, s[{rX}:{rX+3}], 0 offen")
        A(f"  buffer_load_dwordx4 v[{x+8}:{x+11}], v{vI}, s[{rX}:{rX+3}], 0 offen offset:128")
        A(f"  s_cbranch_scc1 B_u{1-n}")
        A(f"  buffer_load_dwordx4 v[{x+4}:{x+7}], v{vI+1}, s[{rX}:{rX+3}], 0 offen")
        A(f"  buffer_load_dwordx4 v[{x+12}:{x+15}], v{vI+1}, s[{rX}:{rX+3}], 0 offen offset:128")
    s, t = flush_block(f"B_sp{n}_f", qa, 1)
    blk = (f"B_sp{n}:\n  s_sub_u32 s{sU}, s{sU}, 1\n" + abuild(vAa, r, 0x3) + "\n" + abuild(vAb, r, 0xc) + "\n"
           + f"  s_add_u32 s56, s{sU}, 1\n  s_cmp_eq_u32 s56, s{sODD}\n" + smf(vAa, x) + f"\n  s_cbranch_scc1 B_odd{n}\n  s_nop 0\n" + s
           + SH + "\n" + smf(vAb, x) + f"\n  s_branch B_sp{n}_ret\n" + t
           + f"B_odd{n}:\n  v_add_u32 v{vT+5}, v{qa}, v{cACQ}\n  s_branch B_final_flush\n"
           + f"B_nf{n}:\n  s_cmp_lg_u32 s{sU}, 0\n  s_cbranch_scc1 B_u{1-n}\n"
           + f"  v_add_u32 v{vT+5}, v{qa+1}, v{cACQ}\n  s_branch B_final_flush\n")
    ool.append(blk)

body(0)
body(1)
A("  s_branch B_u0")
A("B_final_flush:")
ts(6)
FE = 58
def wv_frags(lbl):
    A(f"""  s_cmp_gt_u32 s{sW}, 7
  s_cbranch_scc1 {lbl}
  s_and_b32 s56, s{sW}, 1
  s_lshl_b32 s56, s56, 7
  s_xor_b32 s56, s56, s{sT64}
  v_xor_b32 v{vT}, s56, v{cWF}
  v_add_u32 v{vT}, {L_WV - L_WQ}, v{vT}
  v_xor_b32 v{vT+1}, 64, v{vT}""")
    for tp in range(2):
        for s in range(4):
            w_frag_reads(vT + tp, FE + 32*tp, s)
    A(f"{lbl}:")
wv_frags("B_nofr")
RT = 22
A(f"""  s_waitcnt lgkmcnt(0)
  s_barrier
  {"s_memrealtime s[22:23]" if opt["ts"] == 2 else ""}
  s_mov_b64 exec, s[48:49]
  s_cmp_lg_u32 s63, 0
  s_cbranch_scc1 B_final_special
B_final_rmw:
  ds_read_b128 v[{RT}:{RT+3}], v{vT+5}
  ds_read_b128 v[{RT+4}:{RT+7}], v{vT+5} offset:256
  s_waitcnt lgkmcnt(1)""")
for k in range(0, 4, 2):
    A(f"  v_pk_add_f32 v[{vD+k}:{vD+k+1}], v[{vD+k}:{vD+k+1}], v[{RT+k}:{RT+k+1}]")
A(f"  ds_write_b128 v{vT+5}, v[{vD}:{vD+3}]")
A("  s_waitcnt lgkmcnt(1)")
for k in range(4, 8, 2):
    A(f"  v_pk_add_f32 v[{vD+k}:{vD+k+1}], v[{vD+k}:{vD+k+1}], v[{RT+k}:{RT+k+1}]")
A(f"  ds_write_b128 v{vT+5}, v[{vD+4}:{vD+7}] offset:256")
A(f"""  s_cmp_eq_u32 s63, 1
  s_cbranch_scc1 B_final_phase2
B_final_done:
  s_mov_b64 exec, -1
B_round_fin:
  s_or_b32 s56, s50, s51
  s_or_b32 s57, s52, s53
  s_or_b32 s56, s56, s57
  s_cbranch_scc1 B_more
  s_mov_b64 s[{rOUT}:{rOUT+1}], s[{sOUT}:{sOUT+1}]
  s_mov_b32 s{rOUT+2}, {N*256}
  s_mov_b32 s{rOUT+3}, 0x20000
  s_mul_i32 s3, s2, {NPB*256}
  s_and_b32 s56, s{sW}, 1
  s_lshl_b32 s56, s56, 7
  s_add_u32 s3, s3, s56
  s_cmp_gt_u32 s{sW}, 7
  s_waitcnt lgkmcnt(0)
  {"s_memrealtime s[0:1]" if opt["ts"] == 2 else ""}
  s_barrier""")
ts(7)
if opt["ts"]: A("  s_memtime s[78:79]")
A("  s_cbranch_scc1 B_end")
AC = 22
DO = [4, 8, 12, 54]
for s in range(4):
    A(f"  ds_read_b128 v[{AC+8*s}:{AC+8*s+3}], v{cAR} offset:{NS+s*128}")
    A(f"  ds_read_b128 v[{AC+8*s+4}:{AC+8*s+7}], v{cAR} offset:{NS+s*128+16}")
for s in range(4):
    A(f"  s_waitcnt lgkmcnt({6-2*s})")
    for k in range(4):
        A(f"  v_cvt_pk_bf16_f32 v{AC+4*s+k}, v{AC+8*s+2*k}, v{AC+8*s+2*k+1}")
    A("  s_nop 1")
    for tp in range(2):
        for b in range(2):
            d = DO[2*tp+b]
            a = FE + 32*tp + 4*(b*4+s)
            c = "0" if s == 0 else f"v[{d}:{d+3}]"
            A(f"  v_mfma_f32_16x16x32_bf16 v[{d}:{d+3}], v[{a}:{a+3}], v[{AC+4*s}:{AC+4*s+3}], {c}")
if opt["ts"] == 2: ts(1)
A(f"  s_or_b32 s56, s2, s{sW}")
A("  s_nop 4")
for tp in range(2):
    if tp: A("  s_nop 0")
    for k in range(4):
        d = DO[2*tp + k//2] + 2*(k % 2)
        A(f"  v_cvt_pk_bf16_f32 v{38+4*tp+k}, v{d}, v{d+1}")
    A(f"  ds_write_b128 v{cSW}, v[{38+4*tp}:{41+4*tp}] offset:{64*tp}")
A(f"""  ds_read_b128 v[22:25], v{cSR}
  ds_read_b128 v[26:29], v{cSR} offset:1152
  s_waitcnt lgkmcnt(1)
  buffer_store_dwordx4 v[22:25], v{cOUT}, s[{rOUT}:{rOUT+3}], s3 offen{OF}
  s_mov_b64 exec, s[{sMO}:{sMO+1}]
  s_cbranch_execz B_nost2
  s_waitcnt lgkmcnt(0)
  buffer_store_dwordx4 v[26:29], v{cOUT}, s[{rOUT}:{rOUT+3}], s3 offen offset:2048{OF}
B_nost2:
  {"s_memrealtime s[84:85]" if opt["ts"] == 2 else ""}
  s_cbranch_scc1 B_end
  v_mov_b32 v4, 0
  v_mov_b32 v5, s{sEP}
  s_mov_b64 exec, 1
  global_store_dword v4, v5, s[{sWS}:{sWS+1}]
B_end:""")
if opt["ts"]:
    A("  s_waitcnt vmcnt(0)")
    ts(8)
    A("  s_mov_b64 exec, -1")
    ts_store(range(13))
A("B_done:\n  s_endpgm")

for blk in ool:
    A(blk)
A(f"""B_small:
  s_waitcnt lgkmcnt(0)
  s_cmp_eq_u32 s{sP}, 0
  s_cbranch_scc1 B_empty""")
for xb in vX[:2 if MID else DP]:
    movs(xb+4, 4, 0)
    movs(xb+12, 4, 0)
if MID:
    A(f"  s_cmp_ge_u32 s{sP}, 2\n  s_cbranch_scc1 B_start")
A(loads_a(vX[0], vI))
if DP == 2:
    A(f"  s_cmp_eq_u32 s{sP}, 1\n  s_cbranch_scc1 B_started")
    A(loads_b(vX[0], vI+1))
    A(f"  s_cmp_eq_u32 s{sP}, 2\n  s_cbranch_scc1 B_started")
    A(loads_a(vX[1], vT+4))
A(f"""  s_branch B_started
B_empty:
  s_waitcnt vmcnt(0)
  s_barrier""")
wv_frags("B_nofr2")
A("  s_branch B_round_fin")
A("B_lateq:")
q_compute()
A(f"""  s_mov_b32 s{sQL}, 0
  s_branch B_lateq_ret
B_flags:
  s_cmp_lg_u32 s62, 0
  s_cbranch_scc1 B_noflags
  s_bitcmp1_b32 s56, 3
  s_cbranch_scc1 B_raw
  v_mov_b32 v{vT+4}, {L_FLAGS}
  ds_read_b128 v[{vT+4}:{vT+7}], v{vT+4}
  s_waitcnt lgkmcnt(0)
  v_readfirstlane_b32 s53, v{vT+7}
  v_readfirstlane_b32 s50, v{vT+4}
  v_readfirstlane_b32 s51, v{vT+5}
  v_readfirstlane_b32 s52, v{vT+6}
  s_branch B_noflags""")
A(f"""B_qnmore:
  v_add_u32 v{vT}, 64, v{vT}
  s_branch B_qn
B_mode:
  s_max_u32 s{sP}, s{sP}, 13               ; short lists: longer streams instead of split nodes
  v_cvt_f32_u32 v{vT+4}, s{sP}
  v_lshrrev_b32 v{vT+5}, 4, v{vT+2}        ; qstart
  v_rcp_f32 v{vT+4}, v{vT+4}
  v_add_u32 v{vT+6}, v{vT+5}, v{vT+1}      ; qend
  v_cvt_f32_u32 v{vT+5}, v{vT+5}
  v_cvt_f32_u32 v{vT+6}, v{vT+6}
  v_add_f32 v{vT+5}, 0.5, v{vT+5}
  v_add_f32 v{vT+6}, 0.5, v{vT+6}
  v_mul_f32 v{vT+5}, v{vT+5}, v{vT+4}
  v_mul_f32 v{vT+6}, v{vT+6}, v{vT+4}
  v_cvt_u32_f32 v{vT+5}, v{vT+5}
  v_cvt_u32_f32 v{vT+6}, v{vT+6}
  v_sub_u32 v{vT+5}, v{vT+6}, v{vT+5}
  v_cmp_lt_u32 vcc, 1, v{vT+5}
  v_cmp_lt_u32 s[58:59], 2, v{vT+5}
  s_cmp_lg_u64 vcc, 0
  s_cselect_b32 s56, 1, 0
  s_max_u32 s63, s63, s56
  s_cmp_lg_u64 s[58:59], 0
  s_cselect_b32 s56, 2, 0
  s_max_u32 s63, s63, s56
  s_branch B_modedone
B_final_phase2:
  s_waitcnt lgkmcnt(0)
  s_barrier
  s_mov_b32 exec_lo, 0
  s_mov_b32 exec_hi, s49
  s_mov_b32 s63, 0
  s_branch B_final_rmw
B_final_special:
  s_cmp_ge_u32 s63, 2
  s_cbranch_scc1 B_final_atomic
  s_mov_b32 exec_hi, 0
  s_branch B_final_rmw
B_final_atomic:
  v_cmp_le_u32 vcc, {NS}, v{vT+5}
  s_and_b64 exec, exec, vcc""")
for k in range(8):
    A(f"  ds_add_f32 v{vT+5}, v{vD+k} offset:{(k//4)*256 + (k%4)*4}")
A("  s_branch B_final_done")
A(f"""B_mark:
  s_mov_b64 exec, vcc
  v_lshrrev_b32 v{vT}, 3, v0
  v_mov_b32 v{vT+1}, 1
  v_lshlrev_b32 v{vT+1}, v{vT}, v{vT+1}
  v_lshrrev_b32 v{vT}, 5, v{vT}
  v_lshlrev_b32 v{vT}, 2, v{vT}
  ds_or_b32 v{vT}, v{vT+1} offset:{L_FLAGS}
  ds_or_b32 v{cFOUR}, v{cFOUR} offset:{L_FLAGS+12}
  s_mov_b64 exec, -1""")
for i in range(4):
    A(f"  v_and_b32 v{vP+i}, 0xfc, v{vP+i}")
A("  s_branch B_nomark")
def ovf_srd():
    A(f"""  s_add_u32 s{rOVF}, s{sWS}, {WS_OVF:#x}
  s_addc_u32 s{rOVF+1}, s{sWS+1}, 0
  s_mov_b32 s{rOVF+2}, {OVFCNT_REL + NCH*4}
  s_mov_b32 s{rOVF+3}, 0x20000""")
if not opt["xb"]:
    A("F_idle:\n  s_mov_b64 exec, -1")
    dma_x("F_nx2")
    A("  s_branch F_placed")
A("F_ovf:")
ovf_srd()
A(f"""  v_mov_b32 v{vT+5}, {P_OCNT}
  s_mul_i32 s3, s2, {CH*4}""")
for i in range(4):
    A(f"""  v_cmp_lt_u32 vcc, s58, v{pR+i}
  s_mov_b64 exec, vcc
  s_cbranch_execz F_ov{i}
  ds_add_rtn_u32 v{vT+7}, v{vT+5}, v{vT+4}
  v_lshl_or_b32 v{pE+i}, v{pS+i}, 14, v{pD+i}
  s_waitcnt lgkmcnt(0)
  buffer_store_dword v{pE+i}, v{vT+7}, s[{rOVF}:{rOVF+3}], s3 offen sc1
  s_nop 0
  v_lshlrev_b32 v{pE+i}, 5, v{pB+i}
  v_mov_b32 v{pB+i}, {JUNK//32}
F_ov{i}:
  s_mov_b64 exec, s[40:41]""")
A(f"""  s_waitcnt vmcnt(0)
  s_branch F_ovfdone
F_cnt:
  v_mov_b32 v{vT+5}, {JUNK}
  v_mov_b32 v{vT+6}, 64""")
for i in range(4):
    A(f"""  s_mov_b64 exec, s[40:41]
  v_cmp_le_u32 vcc, v{vT+5}, v{pR+i}
  s_mov_b64 exec, vcc
  ds_or_b32 v{pE+i}, v{vT+6}""")
A(f"""  s_mov_b64 exec, -1
  s_cmp_lg_u32 s{sW}, 0
  s_cbranch_scc1 F_cnt2""")
ovf_srd()
A(f"""  s_lshl_b32 s99, s2, 2
  s_add_u32 s99, s99, {OVFCNT_REL:#x}
  v_mov_b32 v{pB+2}, 0
  v_lshrrev_b32 v{pB}, 2, v{pB}
  s_mov_b64 exec, 1
  buffer_store_dword v{pB}, v{pB+2}, s[{rOVF}:{rOVF+3}], s99 offen sc1
  s_mov_b64 exec, -1
  s_waitcnt vmcnt(0)
F_cnt2:
  s_waitcnt lgkmcnt(0)
  s_barrier
  ds_read_b128 v[{pD}:{pD+3}], v119
  ds_read_b128 v[{pS}:{pS+3}], v119 offset:1024
  s_branch F_cntdone
F_giveup:
  s_waitcnt vmcnt(0)
  s_mov_b64 exec, -1
  v_mov_b32 v{vT+1}, 8
  ds_or_b32 v{cFOUR}, v{vT+1} offset:{L_FLAGS+12}""")
movs(vE, 4, 0)
A(f"""  s_branch F_polled
B_raw:
  s_mov_b32 s50, -1
  s_mov_b32 s51, -1
  s_mov_b32 s52, -1
  s_mov_b32 s53, {(1 << (NCH - 96)) - 1:#x}
  s_mov_b32 s62, 3
B_more:
  s_waitcnt vmcnt(0) lgkmcnt(0)
  s_barrier
  s_ff1_i32_b32 s56, s50
  s_cmp_lg_u32 s50, 0
  s_cbranch_scc0 B_m1
  s_bitset0_b32 s50, s56
  s_branch B_mdone
B_m1:
  s_ff1_i32_b32 s56, s51
  s_cmp_lg_u32 s51, 0
  s_cbranch_scc0 B_m2
  s_bitset0_b32 s51, s56
  s_add_u32 s56, s56, 32
  s_branch B_mdone
B_m2:
  s_ff1_i32_b32 s56, s52
  s_cmp_lg_u32 s52, 0
  s_cbranch_scc0 B_m3
  s_bitset0_b32 s52, s56
  s_add_u32 s56, s56, 64
  s_branch B_mdone
B_m3:
  s_ff1_i32_b32 s56, s53
  s_bitset0_b32 s53, s56
  s_add_u32 s56, s56, 96
B_mdone:
  s_mul_i32 s57, s56, {CH*4}
  s_cmp_eq_u32 s62, 3
  s_cbranch_scc1 B_mraw
  s_mov_b32 s62, 2""")
ovf_srd()
A(f"""  s_lshl_b32 s58, s56, 2
  s_add_u32 s58, s58, {OVFCNT_REL:#x}
  v_mov_b32 v{vT}, 0
  buffer_load_dword v{vT+1}, v{vT}, s[{rOVF}:{rOVF+3}], s58 offen sc1
  buffer_load_dwordx4 v[{vE}:{vE+3}], v{vT16}, s[{rOVF}:{rOVF+3}], s57 offen sc1
  s_waitcnt vmcnt(0)
  v_readfirstlane_b32 s60, v{vT+1}
  s_branch B_mgot
B_mraw:
  s_mov_b64 s[{rOVF}:{rOVF+1}], s[{sDST}:{sDST+1}]
  s_mov_b32 s{rOVF+2}, 1600000
  s_mov_b32 s{rOVF+3}, 0x20000
  buffer_load_dwordx4 v[{vE}:{vE+3}], v{vT16}, s[{rOVF}:{rOVF+3}], s57 offen
  s_waitcnt vmcnt(0)
  s_mov_b64 s[{rOVF}:{rOVF+1}], s[{sSRC}:{sSRC+1}]
  buffer_load_dwordx4 v[{vR}:{vR+3}], v{vT16}, s[{rOVF}:{rOVF+3}], s57 offen
  s_cmp_eq_u32 s56, {NCH-1}
  s_movk_i32 s60, {CH}
  s_cselect_b32 s60, {CHL}, s60
  s_waitcnt vmcnt(0)""")
for i in range(4):
    A(f"  v_lshl_or_b32 v{vE+i}, v{vR+i}, 14, v{vE+i}")
A("B_mgot:")
movs(vD, 8, 0)
A(f"""  v_cmp_gt_u32 vcc, 16, v0
  s_mov_b64 exec, vcc
  ds_write_b128 v{vT16}, v[{vD}:{vD+3}] offset:{L_CNT}
  s_mov_b64 exec, -1
  ds_write_b128 v{vT16}, v[{vD}:{vD+3}] offset:{L_LIST}
  ds_write_b128 v{vT16}, v[{vD}:{vD+3}] offset:49152
  s_mul_i32 s61, s2, {NPB}
  s_sub_u32 s61, s61, 1
  v_lshlrev_b32 v{vT}, 2, v0
  s_min_u32 s60, s60, {CH}""")
for i in range(4):
    A(f"""  v_and_b32 v{vT+1}, 0x3fff, v{vE+i}
  v_subrev_u32 v{vT+1}, s61, v{vT+1}       ; local+1
  v_lshrrev_b32 v{vE+i}, 14, v{vE+i}
  v_lshl_or_b32 v{vE+i}, v{vE+i}, 8, v{vT+1}
  v_add_u32 v{vT+2}, {i}, v{vT}
  v_cmp_gt_u32 vcc, s60, v{vT+2}
  v_add_u32 v{vT+1}, -1, v{vT+1}
  v_cmp_gt_u32 s[56:57], {NPB}, v{vT+1}
  s_and_b64 vcc, vcc, s[56:57]
  s_nop 1
  v_cndmask_b32 v{vE+i}, 0, v{vE+i}, vcc""")
A("""  s_waitcnt lgkmcnt(0)
  s_barrier
  s_branch B_build
F_code_end:""")

A(f"""
.section .rodata,"a"
.p2align 6
.amdhsa_kernel {KN}
  .amdhsa_next_free_vgpr {NV}
  .amdhsa_next_free_sgpr 102
  .amdhsa_accum_offset {(NV+3)//4*4}
  .amdhsa_group_segment_fixed_size 0
  .amdhsa_kernarg_size 64
  .amdhsa_user_sgpr_count 2
  .amdhsa_user_sgpr_kernarg_segment_ptr 1
  .amdhsa_system_sgpr_workgroup_id_x 1
.end_amdhsa_kernel""")
print("\n".join(L))
```
